```python
import torch

def _softmax(x, axis=-1):
    return torch.softmax(x, dim=axis)
def _gelu(x):
    return torch.nn.functional.gelu(x, approximate="tanh")
def _silu(x):
    return torch.nn.functional.silu(x)
def _sigmoid(x):
    return torch.sigmoid(x)
def _layernorm(x, axis=-1, eps=1e-5):
    m = x.mean(dim=axis, keepdim=True)
    v = x.var(dim=axis, keepdim=True, unbiased=False)
    return (x - m) / torch.sqrt(v + eps)
def _scatter_add(tgt, idx, src, axis=0):
    return tgt.clone().index_add_(axis, idx, src)
def _segment_sum(src, seg, n):
    out = torch.zeros((n,) + src.shape[1:], dtype=src.dtype)
    return out.index_add_(0, seg, src)
def _pad(x, pw):
    flat = tuple(v for pair in reversed(pw) for v in pair)
    return torch.nn.functional.pad(x, flat)

kernel_name = 'gated_mix__ssm_conv_h3__glu_gated_glu__prompt'

def setup_inputs():

    _w = (lambda a: (lambda t: t.to(torch.bfloat16) if t.is_floating_point() else t)(torch.as_tensor(a)))
    def _A_setup():
        B, S, D = 1, 2048, 576
        ks = 4
        return {
            "q": _w((lambda *s: torch.randn(*s, dtype=torch.bfloat16) * 0.05)(B, S, D)),
            "k": _w((lambda *s: torch.randn(*s, dtype=torch.bfloat16) * 0.8)(B, S, D)),
            "v": _w((lambda *s: torch.randn(*s, dtype=torch.bfloat16) * 0.8)(B, S, D)),
            "shift_k": _w((lambda *s: torch.randn(*s, dtype=torch.bfloat16) * 0.8)(D, ks) * 0.5),
            "ssm_k": _w((lambda *s: torch.randn(*s, dtype=torch.bfloat16) * 0.8)(D, S) * (1.0 / S ** 0.5)),
            "ssm_D": _w((lambda *s: torch.randn(*s, dtype=torch.bfloat16) * 0.8)(D)),
        }
    _A_in = _A_setup()

    def _B_setup():
        B, S, D, F = 1, 2048, 576, 4608
        return {
            "x": _w((lambda *s: torch.randn(*s, dtype=torch.bfloat16) * 0.05)(B, S, D)),
            "w_gate": _w((lambda *s: torch.randn(*s, dtype=torch.bfloat16) * 0.4)(D, F)),
            "w_up": _w((lambda *s: torch.randn(*s, dtype=torch.bfloat16) * 0.05)(D, F)),
            "w_down": _w((lambda *s: torch.randn(*s, dtype=torch.bfloat16) * 0.05)(F, D)),
        }
    _B_in = _B_setup()

    return {
        "A_q": _A_in["q"],
        "A_k": _A_in["k"],
        "A_v": _A_in["v"],
        "A_shift_k": _A_in["shift_k"],
        "A_ssm_k": _A_in["ssm_k"],
        "A_ssm_D": _A_in["ssm_D"],
        "B_x": _B_in["x"],
        "B_w_gate": _B_in["w_gate"],
        "B_w_up": _B_in["w_up"],
        "B_w_down": _B_in["w_down"],
        "gate_w": _w((lambda *s: torch.randn(*s, dtype=torch.bfloat16) * 0.05)(576) * 16.0),
    }

def reference(A_q, A_k, A_v, A_shift_k, A_ssm_k, A_ssm_D, B_x, B_w_gate, B_w_up, B_w_down, gate_w):
    def _A_ref(q, k, v, shift_k, ssm_k, ssm_D):
        B, S, D = q.shape
        ks = shift_k.shape[-1]
        k_pad = _pad(k, ((0, 0), (ks - 1, 0), (0, 0)))
        k_shift = torch.zeros_like(k)
        for t in range(ks):
            k_shift = k_shift + k_pad[:, t:t + S, :] * shift_k[:, ks - 1 - t][None, None, :]
        kv = k_shift * v
        L = 2 * S
        kv_pad = _pad(kv, ((0, 0), (0, S), (0, 0)))
        kf_pad = _pad(ssm_k, ((0, 0), (0, S)))
        kv_f = (lambda x, axes=(-2,-1): torch.fft.rfft2(x.float(), dim=axes))(kv_pad[:, None, :, :], axes=(1, 2))
        kf_f = (lambda x, axes=(-2,-1): torch.fft.rfft2(x.float(), dim=axes))(kf_pad[:, None, :], axes=(1, 2))
        kf_f = (lambda x, *d: x.permute(*d))(kf_f, 1, 2, 0)
        y_f = kv_f * kf_f[None, :, :, :]
        y = (lambda x, s, axes=(-2,-1): torch.fft.irfft2(x, s=s, dim=axes).to(torch.bfloat16))(y_f, (1, L), axes=(1, 2))[:, 0, :S, :]
        y = y + kv * ssm_D[None, None, :]
        return q * y

    def _B_ref(x, w_gate, w_up, w_down):
        g = torch.einsum("bsd,df->bsf", x, w_gate)
        u = torch.einsum("bsd,df->bsf", x, w_up)
        h = _sigmoid(g) * u
        return torch.einsum("bsf,fd->bsd", h, w_down)

    x = A_q
    g = _sigmoid((x * gate_w).sum(-1, keepdims=True))
    a = _A_ref(x, A_k, A_v, A_shift_k, A_ssm_k, A_ssm_D)
    b = _B_ref(x, B_w_gate, B_w_up, B_w_down)
    return g * a + (1 - g) * b
```

```python
class Asm:
    def __init__(self):
        self.L = []
        self.vm = []
        self.lg = []
        self.nlab = 0
    def __call__(self, s):
        for ln in s.split("\n"):
            ln = ln.strip()
            if ln: self.L.append("    " + ln)
    def c(self, s): self.L.append("    ; " + s)
    def label(self, l): self.L.append(l + ":")
    def newlabel(self, p="L"):
        self.nlab += 1
        return f"{p}_{self.nlab}"
    def raw(self, s): self.L.append(s)
    def vmem(self, s, tag=None):
        self(s); self.vm.append(tag)
    def lds(self, s, tag=None):
        self(s); self.lg.append(tag)
    def _need(self, q, tags):
        idx = -1
        for i, t in enumerate(q):
            if t in tags: idx = i
        return idx
    def wait_vm(self, *tags):
        idx = self._need(self.vm, tags)
        if idx < 0: return
        n = len(self.vm) - 1 - idx
        n = min(n, 63)
        self(f"s_waitcnt vmcnt({n})")
        self.vm = self.vm[len(self.vm)-n:] if n else []
    def wait_lg(self, *tags):
        idx = self._need(self.lg, tags)
        if idx < 0: return
        n = len(self.lg) - 1 - idx
        n = min(n, 15)
        self(f"s_waitcnt lgkmcnt({n})")
        self.lg = self.lg[len(self.lg)-n:] if n else []
    def wait_all_vm(self):
        self("s_waitcnt vmcnt(0)"); self.vm = []
    def wait_all_lg(self):
        self("s_waitcnt lgkmcnt(0)"); self.lg = []
    def wait_all(self):
        self("s_waitcnt vmcnt(0) lgkmcnt(0)"); self.vm = []; self.lg = []
    def text(self): return "\n".join(self.L) + "\n"

def vr(b, n=1, k="v"):
    return f"{k}{b}" if n == 1 else f"{k}[{b}:{b+n-1}]"
def sr(b, n=1):
    return f"s{b}" if n == 1 else f"s[{b}:{b+n-1}]"

def kernel_begin(a, name):
    a.raw(".text")
    a.raw(f".globl {name}")
    a.raw(".p2align 8")
    a.raw(f".type {name},@function")
    a.label(name)

def kernel_desc(a, name, nvgpr, accum, nsgpr=102):
    a.raw('.section .rodata,"a"')
    a.raw(".p2align 6")
    a.raw(f".amdhsa_kernel {name}")
    a.raw(f"  .amdhsa_next_free_vgpr {nvgpr}")
    a.raw(f"  .amdhsa_next_free_sgpr {nsgpr}")
    a.raw(f"  .amdhsa_accum_offset {accum}")
    a.raw("  .amdhsa_group_segment_fixed_size 0")
    a.raw("  .amdhsa_kernarg_size 112")
    a.raw("  .amdhsa_user_sgpr_count 2")
    a.raw("  .amdhsa_user_sgpr_kernarg_segment_ptr 1")
    a.raw("  .amdhsa_system_sgpr_workgroup_id_x 1")
    a.raw(".end_amdhsa_kernel")

def srd(a, d, base, nbytes, off=0):
    if off:
        a(f"s_add_u32 s{d}, s{base}, {off:#x}")
        a(f"s_addc_u32 s{d+1}, s{base+1}, 0")
    else:
        a(f"s_mov_b32 s{d}, s{base}")
        a(f"s_mov_b32 s{d+1}, s{base+1}")
    a(f"s_mov_b32 s{d+2}, {nbytes:#x}")
    a(f"s_mov_b32 s{d+3}, 0x20000")
```

```python
import sys
from asmlib import *

S, D, F = 2048, 576, 4608
XBYTES = S*D*2
WBYTES = D*F*2
H_OFF, H_BYTES = 0, S*F*2
KVT_OFF = 0x1200000
ZT_OFF = 0x1440000
G_OFF = 0x1680000
FLAG_OFF = 0x1690000
NLOG2E = 0xbfb8aa3b
HST = 147456

def emit_prep(a, PB):
    PBV = PB + 10528
    a("s_load_dwordx4 s[4:7], s[0:1], 0")
    a("s_load_dwordx4 s[8:11], s[0:1], 16")
    a("s_load_dwordx2 s[12:13], s[0:1], 80")
    a("s_load_dwordx2 s[14:15], s[0:1], 104")
    a("v_lshrrev_b32 v1, 6, v0")
    a("v_and_b32 v2, 63, v0")
    a("v_readfirstlane_b32 s16, v1")
    a("s_and_b32 s17, s2, 7")
    a("s_lshr_b32 s18, s2, 3")
    a("s_and_b32 s19, s17, 3")
    a("s_lshr_b32 s17, s17, 2")
    a("s_lshl_b32 s17, s17, 5")
    a("s_add_u32 s17, s17, s18")
    a("s_lshl_b32 s17, s17, 5")
    a("s_mul_i32 s19, s19, 144")
    a("s_waitcnt lgkmcnt(0)")
    a("s_cmp_lt_u32 s16, 2")
    a("s_cselect_b32 s20, s6, s8")
    a("s_cselect_b32 s21, s7, s9")
    a(f"s_mov_b32 s22, {XBYTES}")
    a("s_mov_b32 s23, 0x20000")
    a("s_cselect_b32 s40, 3, 0")
    a(f"s_mov_b32 s41, {PBV}")
    a(f"s_cselect_b32 s41, {PB+288}, s41")
    a("s_and_b32 s42, s16, 1")
    a("s_mul_i32 s43, s42, 5*64")
    a("s_mul_i32 s42, s42, 5*1024")
    a("s_add_u32 s41, s41, s42")
    a("s_sub_u32 s44, s17, s40")
    a("s_mul_i32 s44, s44, 1152")
    a("s_lshl_b32 s45, s19, 1")
    a("s_add_u32 s44, s44, s45")
    a("v_add_u32 v3, s43, v2")
    for j in range(5):
        a("v_mul_u32_u24 v4, 3641, v3")
        a("v_lshrrev_b32 v4, 16, v4")
        a("v_mul_u32_u24 v5, 1152-288, v4")
        a("v_lshl_add_u32 v5, v3, 4, v5")
        a("v_add_u32 v5, s44, v5")
        a(f"s_add_u32 m0, s41, {j*1024}")
        if j == 4:
            lab = a.newlabel("L_pk")
            a("s_cmp_eq_u32 s16, 3")
            a(f"s_cbranch_scc1 {lab}")
        a("v_add_u32 v3, 64, v3")
        a("buffer_load_dwordx4 v5, s[20:23], 0 offen lds")
        if j == 4: a.label(lab)
    srd(a, 24, 10, D*4*2)
    srd(a, 28, 14, XBYTES, KVT_OFF)
    a("v_and_b32 v6, 15, v2")
    a("v_lshrrev_b32 v7, 4, v2")
    a("s_lshl_b32 s46, s16, 4")
    a("s_add_u32 s46, s46, s19")
    a("v_add_u32 v8, s46, v6")
    a("v_lshlrev_b32 v9, 3, v8")
    a("buffer_load_dwordx2 v[10:11], v9, s[24:27], 0 offen")
    a("buffer_load_dwordx2 v[12:13], v9, s[24:27], 0 offen offset:512")
    a("buffer_load_dwordx2 v[14:15], v9, s[24:27], 0 offen offset:1024")
    a("v_lshlrev_b32 v16, 12, v8")
    a("v_lshl_add_u32 v16, v7, 4, v16")
    a("s_lshl_b32 s47, s17, 1")
    a("v_add_u32 v16, s47, v16")
    a("v_lshrrev_b32 v17, 2, v6")
    a("v_lshl_add_u32 v17, v7, 3, v17")
    a("v_mul_u32_u24 v17, 288, v17")
    a("v_and_b32 v18, 3, v2")
    a("v_lshl_add_u32 v17, v18, 3, v17")
    a("s_lshl_b32 s47, s16, 5")
    a(f"s_add_u32 s47, s47, {PB}")
    a("v_add_u32 v17, s47, v17")
    srd(a, 32, 4, XBYTES)
    srd(a, 36, 12, D*2)
    lg = a.newlabel("L_nog")
    a("s_sub_u32 s47, s16, 1")
    a("s_cmp_gt_u32 s47, 1")
    a(f"s_cbranch_scc1 {lg}")
    a("s_lshl_b32 s47, s47, 2")
    a("s_lshl_b32 s40, s2, 3")
    a("s_add_u32 s47, s47, s40")
    a("v_add_u32 v19, s47, v7")
    a("v_mul_u32_u24 v20, 1152, v19")
    a("v_lshlrev_b32 v21, 4, v6")
    a("v_add_u32 v20, v20, v21")
    for j in range(4): a(f"v_mov_b32 v{80+j}, 0\nv_mov_b32 v{100+j}, 0")
    for j in range(4):
        a(f"buffer_load_dwordx4 v[{64+4*j}:{67+4*j}], v20, s[32:35], 0 offen offset:{256*j}")
        a(f"buffer_load_dwordx4 v[{84+4*j}:{87+4*j}], v21, s[36:39], 0 offen offset:{256*j}")
    a("s_mov_b32 exec_lo, 0x00ff00ff\ns_mov_b32 exec_hi, 0x00ff00ff")
    a("buffer_load_dwordx4 v[80:83], v20, s[32:35], 0 offen offset:1024")
    a("buffer_load_dwordx4 v[100:103], v21, s[36:39], 0 offen offset:1024")
    a("s_mov_b64 exec, -1")
    a.label(lg)
    a("s_waitcnt vmcnt(0)")
    a("s_barrier")
    lend = a.newlabel("L_pend")
    for task in range(3):
        if task == 2:
            a("s_cmp_lg_u32 s16, 0")
            a(f"s_cbranch_scc1 {lend}")
        co = task*128
        for j in range(3): a(f"ds_read_b64_tr_b16 v[{24+2*j}:{25+2*j}], v17 offset:{co + 4*j*288}")
        for j in range(2): a(f"ds_read_b64_tr_b16 v[{30+2*j}:{31+2*j}], v17 offset:{co + 4*j*288 + (PBV-PB)}")
        w0, w1 = 10+2*task, 11+2*task
        a(f"v_alignbit_b32 v22, v{w0}, v{w0}, 16")
        a(f"v_alignbit_b32 v23, v{w1}, v{w1}, 16")
        a("s_waitcnt lgkmcnt(0)")
        for j in range(5): a(f"v_alignbit_b32 v{34+j}, v{25+j}, v{24+j}, 16")
        for s in range(8):
            src = (34 + s//2) if s % 2 == 0 else (25 + s//2)
            a(f"v_dot2_f32_bf16 v{40+s}, v{src}, v23, 0")
        for s in range(8):
            src = (35 + s//2) if s % 2 == 0 else (26 + s//2)
            a(f"v_dot2_f32_bf16 v{40+s}, v{src}, v22, v{40+s}")
        for s in range(8):
            if s % 2 == 0: a(f"v_lshlrev_b32 v{48+s}, 16, v{30+s//2}")
            else: a(f"v_and_b32 v{48+s}, 0xffff0000, v{30+s//2}")
        for s in range(8): a(f"v_mul_f32 v{40+s}, v{40+s}, v{48+s}")
        for j in range(4): a(f"v_cvt_pk_bf16_f32 v{56+j}, v{47-2*j}, v{46-2*j}")
        a(f"s_mov_b32 s47, {task*64*4096}")
        a("buffer_store_dwordx4 v[56:59], v16, s[28:31], s47 offen")
        a("s_nop 1")
    a.label(lend)
    lg2 = a.newlabel("L_nog2")
    a("s_sub_u32 s47, s16, 1")
    a("s_cmp_gt_u32 s47, 1")
    a(f"s_cbranch_scc1 {lg2}")
    a("v_dot2_f32_bf16 v40, v64, v84, 0")
    for j in range(1, 20): a(f"v_dot2_f32_bf16 v40, v{64+j}, v{84+j}, v40")
    a("s_nop 2")
    for sh in (8, 4, 2, 1):
        a("s_nop 1")
        a(f"v_add_f32_dpp v40, v40, v40 row_ror:{sh} row_mask:0xf bank_mask:0xf")
    a("v_cvt_pk_bf16_f32 v40, v40, v40")
    a("v_lshlrev_b32 v40, 16, v40")
    a(f"v_mul_f32 v40, {NLOG2E:#x}, v40")
    a("v_exp_f32 v40, v40")
    a("s_nop 0")
    a("v_add_f32 v40, 1.0, v40")
    a("v_rcp_f32 v40, v40")
    a("s_nop 0")
    a("v_cvt_pk_bf16_f32 v40, v40, v40")
    a("v_lshlrev_b32 v40, 16, v40")
    a("v_sub_f32 v41, 1.0, v40")
    a("v_cvt_pk_bf16_f32 v41, v41, v41")
    a("v_lshlrev_b32 v41, 16, v41")
    srd(a, 32, 14, 16384, G_OFF)
    a("v_lshlrev_b32 v19, 2, v19")
    a("v_add_u32 v20, 8192, v19")
    a("s_mov_b32 exec_lo, 0x00010001\ns_mov_b32 exec_hi, 0x00010001")
    a("buffer_store_dword v40, v19, s[32:35], 0 offen")
    a("buffer_store_dword v41, v20, s[32:35], 0 offen")
    a("s_mov_b64 exec, -1")
    a.label(lg2)

def k_prep(a):
    kernel_begin(a, "prep_kernel")
    a("s_cmp_ge_u32 s2, 256")
    a("s_cbranch_scc1 L_prep_exit")
    emit_prep(a, 0)
    a.label("L_prep_exit")
    a("s_endpgm")

WSLOT = 36992
XB = 3*WSLOT
def acc1(ft, rt):
    t = ft*2 + rt
    return ("v", 32 + 16*t) if t < 14 else ("a", 16*(t-14))
def k_gemm1(a):
    kernel_begin(a, "gemm1_kernel")
    a("s_cmp_ge_u32 s2, 256")
    a("s_cbranch_scc1 L_g1_exit")
    a("s_load_dwordx2 s[4:5], s[0:1], 0")
    a("s_load_dwordx4 s[8:11], s[0:1], 56")
    a("s_load_dwordx2 s[6:7], s[0:1], 104")
    a("v_lshrrev_b32 v1, 6, v0")
    a("v_and_b32 v2, 63, v0")
    a("v_readfirstlane_b32 s24, v1")
    a("s_and_b32 s33, s2, 7")
    a("s_lshr_b32 s34, s2, 3")
    a("s_and_b32 s35, s34, 3")
    a("s_lshr_b32 s34, s34, 2")
    a("s_lshl_b32 s33, s33, 2")
    a("s_add_u32 s33, s33, s35")
    a("s_mul_i32 s26, s33, 144")
    a("s_lshl_b32 s25, s34, 8")
    a("s_lshl_b32 s35, s24, 6")
    a("s_add_u32 s25, s25, s35")
    a("v_mov_b32 v20, v2")
    for j in range(9):
        a("v_mul_u32_u24 v21, 3641, v20")
        a("v_lshrrev_b32 v21, 16, v21")
        a("v_mul_u32_u24 v21, 9216-288, v21")
        a(f"v_lshl_add_u32 v{3+j}, v20, 4, v21")
        if j < 8: a("v_add_u32 v20, 64, v20")
    a("v_lshrrev_b32 v20, 3, v2")
    a("v_mul_u32_u24 v20, 1152, v20")
    a("v_and_b32 v21, 7, v2")
    a("v_lshrrev_b32 v22, 4, v2")
    a("v_xor_b32 v21, v21, v22")
    a("v_lshl_add_u32 v12, v21, 4, v20")
    a("v_xor_b32 v21, 4, v21")
    a("v_lshl_add_u32 v13, v21, 4, v20")
    a("v_add_u32 v13, 8*1152, v13")
    a("s_and_b32 s33, s24, 1")
    a("s_lshr_b32 s34, s24, 1")
    a("s_mul_i32 s27, s33, 32*9216")
    a("s_lshl_b32 s35, s26, 1")
    a("s_add_u32 s27, s27, s35")
    a("s_mul_i32 s30, s34, 18560")
    a("s_mul_i32 s35, s33, 9216")
    a("s_add_u32 s30, s30, s35")
    a("s_mul_i32 s28, s25, 1152")
    a("s_lshl_b32 s31, s24, 13")
    a(f"s_add_u32 s31, s31, {XB}")
    a(f"s_add_u32 s36, s30, {2*WSLOT}")
    a("s_waitcnt lgkmcnt(0)")
    srd(a, 12, 4, XBYTES)
    a("s_cmp_eq_u32 s34, 0")
    a("s_cselect_b32 s16, s8, s10")
    a("s_cselect_b32 s17, s9, s11")
    a(f"s_mov_b32 s18, {WBYTES}")
    a("s_mov_b32 s19, 0x20000")
    srd(a, 20, 6, H_BYTES, H_OFF)

    def dma_w(t, j):
        a(f"s_add_u32 m0, s30, {(t%3)*WSLOT + j*1024}")
        a(f"s_add_u32 s29, s27, {t*64*9216}")
        a.vmem(f"buffer_load_dwordx4 v{3+j}, s[16:19], s29 offen lds", ("W", t))
    def dma_x(t, i, base="s31"):
        a(f"s_add_u32 m0, {base}, {i*1024}")
        a(f"s_add_u32 s29, s28, {(i>>1)*16*1152 + t*128}")
        a.vmem(f"buffer_load_dwordx4 v{12+(i&1)}, s[12:15], s29 offen lds", ("X", t))
    for i in range(8): dma_x(0, i)
    for j in range(9): dma_w(0, j)
    for i in range(8): dma_x(1, i, "s36")
    for j in range(9): dma_w(1, j)
    a("v_and_b32 v20, 31, v2")
    a("v_lshrrev_b32 v21, 5, v2")
    a("v_bfe_u32 v22, v2, 1, 3")
    a("v_xor_b32 v22, v22, v21")
    a("v_lshlrev_b32 v20, 7, v20")
    for ks in range(4):
        a(f"v_xor_b32 v23, {2*ks}, v22")
        a("v_lshl_add_u32 v23, v23, 4, v20")
        a(f"v_add_u32 v{14+ks}, s31, v23")
        a(f"v_add_u32 v{24+ks}, s36, v23")
    a("v_bfe_u32 v20, v2, 4, 1")
    a("v_mul_u32_u24 v20, 18560, v20")
    a("v_bfe_u32 v22, v2, 2, 2")
    a("v_lshl_add_u32 v22, v21, 3, v22")
    a("v_mul_u32_u24 v22, 288, v22")
    a("v_add_u32 v20, v20, v22")
    a("v_and_b32 v22, 3, v2")
    a("v_lshl_add_u32 v18, v22, 3, v20")
    a(f"v_add_u32 v19, {2*WSLOT}, v18")
    a("v_bfe_u32 v20, v2, 4, 1")
    a(f"v_mul_u32_u24 v20, {HST}, v20")
    a("v_lshl_add_u32 v20, v21, 8, v20")
    a("v_and_b32 v22, 15, v2")
    a("v_lshl_add_u32 v28, v22, 4, v20")
    a("s_lshr_b32 s37, s25, 4")
    a(f"s_mul_i32 s37, s37, {HST}")
    a("s_lshl_b32 s38, s26, 5")
    a("s_add_u32 s37, s37, s38")
    a("s_add_u32 s38, s37, 4096")
    a(f"s_add_u32 s39, s37, {2*HST}")
    a(f"s_add_u32 s40, s37, {2*HST+4096}")
    a(f"s_mov_b32 s32, {NLOG2E:#x}")

    def xreg(t, ks, rt): return 64 + 32*(t&1) + 8*ks + 4*rt
    def read_x(t, ks, rt, base=14):
        a.lds(f"ds_read_b128 a[{xreg(t,ks,rt)}:{xreg(t,ks,rt)+3}], v{base+ks} offset:{4096*rt}", ("X", t))
    NR, DD = 6, 4
    def wreg(n): return 128 + 4*(n % NR)
    def read_w(n, h):
        t, i = divmod(n, 36); ks, ft = divmod(i, 9)
        sl = t % 3
        off = (16*ks + 4*h)*288 + ft*32 + (WSLOT if sl == 1 else 0)
        a.lds(f"ds_read_b64_tr_b16 a[{wreg(n)+2*h}:{wreg(n)+2*h+1}], v{19 if sl==2 else 18} offset:{off}", ("Wf", n))

    a.wait_vm(("X", 1))
    for ks in range(4):
        for rt in range(2): read_x(0, ks, rt)
    for ks in range(4):
        for rt in range(2): read_x(1, ks, rt, 24)
    a.wait_all_lg()
    for i in range(8): dma_x(2, i)
    a("s_barrier")
    for n in range(DD):
        read_w(n, 0); read_w(n, 1)
    NF = 324
    for n in range(NF):
        t, i = divmod(n, 36); ks, ft = divmod(i, 9)
        fillA, fillB = [], []
        m = n + DD
        if m < NF:
            if m % 36 == 0:
                pass
            elif m % 36 == 1:
                def bar(t=t):
                    a.wait_all_lg(); a.wait_vm(("W", t+1)); a("s_barrier")
                fillA += [bar, lambda m=m: read_w(m-1, 0), lambda m=m: read_w(m-1, 1)]
                fillB += [lambda m=m: read_w(m, 0), lambda m=m: read_w(m, 1)]
            else:
                fillA.append(lambda m=m: read_w(m, 0)); fillB.append(lambda m=m: read_w(m, 1))
        if t + 2 <= 8 and i < 18 and i % 2 == 0:
            fillB.append(lambda t=t, j=i//2: dma_w(t+2, j))
        if t >= 1 and t + 1 <= 8:
            if i == 18: fillA.append(lambda t=t: a.wait_vm(("X", t+1)))
            if 18 <= i < 22:
                fillA.append(lambda t=t, k=i-18: read_x(t+1, k, 0)); fillB.append(lambda t=t, k=i-18: read_x(t+1, k, 1))
            if t + 2 <= 8:
                if i == 24: fillA.append(lambda t=t: a.wait_lg(("X", t+1)))
                if 24 <= i < 32: fillB.append(lambda t=t, k=i-24: dma_x(t+2, k))
        a.wait_lg(("Wf", n), ("X", t))
        for rt in range(2):
            k, b = acc1(ft, rt)
            d = vr(b, 16, k)
            c = "0" if (t == 0 and ks == 0) else d
            a(f"v_mfma_f32_32x32x16_bf16 {d}, a[{wreg(n)}:{wreg(n)+3}], a[{xreg(t,ks,rt)}:{xreg(t,ks,rt)+3}], {c}")
            for f in (fillA if rt == 0 else fillB): f()
    for ft in range(9):
        for rt in range(2):
            k, b = acc1(ft, rt)
            if k == "a":
                nb = 32 + 16*(ft*2+rt-14)
                for r in range(16): a(f"v_accvgpr_read_b32 v{nb+r}, a{b+r}")
                b = nb
            for r in range(8): a(f"v_mul_f32 v{b+r}, s32, v{b+r}")
            for r in range(8): a(f"v_exp_f32 v{b+r}, v{b+r}")
            for r in range(8): a(f"v_add_f32 v{b+r}, 1.0, v{b+r}")
            for r in range(8): a(f"v_rcp_f32 v{b+r}, v{b+r}")
            for r in range(8): a(f"v_mul_f32 v{b+r}, v{b+r}, v{b+8+r}")
            for j in range(4): a(f"v_cvt_pk_bf16_f32 v{b+8+j}, v{b+2*j}, v{b+2*j+1}")
            so = 37 + 2*rt + (1 if ft == 8 else 0)
            a(f"buffer_store_dwordx4 v[{b+8}:{b+11}], v28, s[20:23], s{so} offen offset:{(ft%8)*512}")
    a.label("L_g1_exit")
    a("s_endpgm")
    a.vm = []; a.lg = []

TS = 4160
CSZ = 4*TS + 4608
def emit_conv(a, sc1=""):
    a("s_lshl_b32 s42, s40, 12")
    a("s_add_u32 s44, s4, s42\ns_addc_u32 s45, s5, 0\ns_mov_b32 s46, 4096\ns_mov_b32 s47, 0x20000")
    srd(a, 48, 8, XBYTES, KVT_OFF)
    srd(a, 52, 8, XBYTES, ZT_OFF)
    a("s_lshr_b32 s43, s40, 1\ns_lshl_b32 s43, s43, 2")
    a("s_load_dword s56, s[6:7], s43")
    a("v_lshlrev_b32 v3, 4, v2")
    for j in range(4):
        a(f"s_add_u32 m0, s41, {4*TS + 512 + j*1024}")
        a(f"s_add_u32 s43, s42, {j*1024}")
        a("buffer_load_dwordx4 v3, s[48:51], s43 offen lds")
    for r in range(4):
        a(f"buffer_load_dwordx4 v[{16+8*r}:{19+8*r}], v3, s[44:47], 0 offen offset:{1024*r}")
        a(f"buffer_load_dwordx2 v[{20+8*r}:{21+8*r}], v3, s[44:47], 0 offen offset:{1024*r+16}")
    a("v_subrev_u32 v4, 32, v3")
    a("v_subrev_u32 v5, 16, v3")
    a("buffer_load_dwordx4 v[48:51], v4, s[44:47], 0 offen")
    a("buffer_load_dwordx2 v[52:53], v5, s[44:47], 0 offen")
    a("v_mov_b32 v6, 0\nv_mov_b32 v7, 0")
    a("v_lshlrev_b32 v8, 3, v2")
    a("v_add_u32 v8, s41, v8")
    a(f"ds_write_b64 v8, v[6:7] offset:{4*TS}")
    a("v_add_u32 v9, s41, v3")
    a("v_and_b32 v12, 3, v2")
    a(f"v_mul_u32_u24 v10, {TS}, v12")
    a("v_bfe_u32 v12, v2, 2, 2")
    a("v_lshrrev_b32 v13, 4, v2")
    a("v_lshlrev_b32 v14, 1, v13")
    a("v_sub_u32 v12, v12, v14")
    a("v_add_u32 v12, 6, v12")
    a("v_lshl_add_u32 v10, v12, 3, v10")
    a("v_add_u32 v10, s41, v10")
    a("v_and_b32 v12, 15, v2")
    a("v_lshl_add_u32 v11, v12, 1, v13")
    a("v_lshlrev_b32 v11, 4, v11")
    a(f"s_add_u32 s43, s41, {4*TS + 480 - 448}")
    a("v_add_u32 v11, s43, v11")
    a("s_waitcnt vmcnt(0)")
    for r in range(5):
        b = 16 + 8*r
        off = 32 + 1024*r if r < 4 else 0
        for j in range(4): a(f"v_alignbit_b32 v{56+j}, v{b+j+1}, v{b+j}, 16")
        for j in range(4): a(f"v_mov_b32 v{60+j}, v{b+j+1}")
        for j in range(4): a(f"v_alignbit_b32 v{64+j}, v{b+j+2}, v{b+j+1}, 16")
        if r == 4: a("s_mov_b64 exec, 3")
        a(f"ds_write_b128 v9, v[56:59] offset:{off}")
        a(f"ds_write_b128 v9, v[60:63] offset:{off+TS}")
        a(f"ds_write_b128 v9, v[64:67] offset:{off+2*TS}")
        a(f"ds_write_b128 v9, v[{b+2}:{b+5}] offset:{off+3*TS}")
        if r == 4: a("s_mov_b64 exec, -1")
        a("s_waitcnt lgkmcnt(0)")
    for r in range(32): a(f"v_mov_b32 v{16+r}, 0")
    a("v_add_u32 v15, 448, v11")
    a("s_mov_b32 s57, 8")
    lab = a.newlabel("L_conv")
    a.label(lab)
    for k in range(8):
        a(f"ds_read_b64 v[{48+4*k}:{49+4*k}], v10 offset:{k*512}")
        a(f"ds_read_b64 v[{50+4*k}:{51+4*k}], v10 offset:{k*512+8}")
        a(f"ds_read_b128 v[{80+4*k}:{83+4*k}], v15 offset:{k*512}")
        if k == 3: a("s_waitcnt lgkmcnt(6)")
    a("v_add_u32 v10, 64, v10")
    a("v_subrev_u32 v15, 64, v15")
    a("s_waitcnt lgkmcnt(0)")
    for aa in range(8):
        for cc in range(8-aa):
            b = aa + cc
            a(f"v_mfma_f32_16x16x32_bf16 v[{16+4*b}:{19+4*b}], v[{48+4*aa}:{51+4*aa}], v[{80+4*cc}:{83+4*cc}], v[{16+4*b}:{19+4*b}]")
    a("s_sub_u32 s57, s57, 1")
    a("s_cmp_lg_u32 s57, 0")
    a(f"s_cbranch_scc1 {lab}")
    a("v_lshrrev_b32 v14, 1, v13")
    a("v_lshl_add_u32 v14, v12, 1, v14")
    a("v_lshlrev_b32 v14, 4, v14")
    a("v_and_b32 v9, 1, v13")
    a("v_lshlrev_b32 v9, 3, v9")
    a("v_sub_u32 v14, v14, v9")
    a(f"s_add_u32 s43, s41, {4*TS + 512 + 8}")
    a("v_add_u32 v14, s43, v14")
    for b in range(8): a(f"ds_read_b64 v[{48+2*b}:{49+2*b}], v14 offset:{b*512}")
    a("s_and_b32 s43, s40, 1")
    a("s_lshl_b32 s58, s56, 16")
    a("s_and_b32 s59, s56, 0xffff0000")
    a("s_cmp_eq_u32 s43, 0")
    a("s_cselect_b32 s56, s58, s59")
    a("v_lshlrev_b32 v9, 5, v12")
    a("v_lshl_add_u32 v9, v13, 3, v9")
    a("s_waitcnt lgkmcnt(0)")
    for b in range(8):
        d0, d1 = 48+2*b, 49+2*b
        a(f"v_and_b32 v64, 0xffff0000, v{d1}")
        a(f"v_lshlrev_b32 v65, 16, v{d1}")
        a(f"v_and_b32 v66, 0xffff0000, v{d0}")
        a(f"v_lshlrev_b32 v67, 16, v{d0}")
        for r in range(4): a(f"v_fmac_f32 v{16+4*b+r}, s56, v{64+r}")
        a(f"v_cvt_pk_bf16_f32 v{16+4*b}, v{16+4*b}, v{17+4*b}")
        a(f"v_cvt_pk_bf16_f32 v{17+4*b}, v{18+4*b}, v{19+4*b}")
        a(f"buffer_store_dwordx2 v[{16+4*b}:{17+4*b}], v9, s[52:55], s42 offen offset:{b*512} {sc1}")

def k_conv(a):
    kernel_begin(a, "conv_kernel")
    a("s_cmp_ge_u32 s2, 144")
    a("s_cbranch_scc1 L_cv_exit")
    a("s_load_dwordx4 s[4:7], s[0:1], 32")
    a("s_load_dwordx2 s[8:9], s[0:1], 104")
    a("v_lshrrev_b32 v1, 6, v0")
    a("v_and_b32 v2, 63, v0")
    a("v_readfirstlane_b32 s24, v1")
    a("s_lshl_b32 s40, s2, 2")
    a("s_add_u32 s40, s40, s24")
    a(f"s_mul_i32 s41, s24, {CSZ}")
    a("s_waitcnt lgkmcnt(0)")
    emit_conv(a)
    a.label("L_cv_exit")
    a("s_endpgm")

RING = 6
RW = RING*4096
HB = 4*RW
def k_gemm2(a):
    kernel_begin(a, "gemm2_kernel")
    a("s_and_b32 s33, s2, 7")
    a("s_lshr_b32 s34, s2, 3")
    a("s_cmp_ge_u32 s34, 30")
    a("s_cbranch_scc1 L_g2_exit")
    a("s_mul_i32 s33, s33, 30")
    a("s_add_u32 s33, s33, s34")
    a("s_cmp_ge_u32 s33, 234")
    a("s_cbranch_scc1 L_g2_exit")
    a("s_load_dwordx2 s[10:11], s[0:1], 0")
    a("s_load_dwordx2 s[12:13], s[0:1], 72")
    a("s_load_dwordx2 s[14:15], s[0:1], 88")
    a("s_load_dwordx2 s[8:9], s[0:1], 104")
    a("v_lshrrev_b32 v1, 6, v0")
    a("v_and_b32 v2, 63, v0")
    a("v_readfirstlane_b32 s24, v1")
    a("s_mul_i32 s34, s33, 7282")
    a("s_lshr_b32 s34, s34, 16")
    a("s_mul_i32 s35, s34, 9")
    a("s_sub_u32 s35, s33, s35")
    a("s_mul_i32 s34, s34, 5")
    a("s_waitcnt lgkmcnt(0)")
    a("s_cmp_ge_u32 s24, 4")
    a("s_cbranch_scc1 L_g2_helper")
    srd(a, 16, 12, WBYTES)
    srd(a, 20, 8, H_BYTES, H_OFF)
    a("v_lshrrev_b32 v4, 3, v2")
    a("v_mul_u32_u24 v4, 1152, v4")
    a("v_bfe_u32 v5, v2, 1, 2")
    a("v_bfe_u32 v6, v2, 4, 2")
    a("v_xor_b32 v5, v5, v6")
    a("v_lshl_add_u32 v4, v5, 5, v4")
    a("v_and_b32 v5, 1, v2")
    a("v_lshl_add_u32 v3, v5, 4, v4")
    a("v_lshlrev_b32 v4, 4, v2")
    for j in range(1, 5): a(f"v_add_u32 v{4+j}, {j*HST}, v4")
    a("s_mul_i32 s26, s24, 36*32*1152")
    a("s_lshl_b32 s27, s35, 7")
    a("s_add_u32 s26, s26, s27")
    a(f"s_mul_i32 s27, s34, {HST}")
    a("s_mul_i32 s28, s24, 36*1024")
    a("s_add_u32 s27, s27, s28")
    a(f"s_mul_i32 s28, s24, {RW}")
    def hreg(sl, st): return 96 + 20*sl + 4*st
    def areg(p, dt): return 216 + 16*p + 4*dt
    def accr(st, dt): return 16 + 16*st + 4*dt
    def loads(sl):
        out = []
        for i in range(4):
            out.append(f"s_add_u32 m0, s28, {sl*4096 + i*1024}\ns_add_u32 s29, s26, {i*8*1152}\nbuffer_load_dwordx4 v3, s[16:19], s29 offen lds")
        for st in range(5):
            out.append(f"buffer_load_dwordx4 v[{hreg(sl,st)}:{hreg(sl,st)+3}], v{4+st}, s[20:23], s27 offen")
        out.append("s_add_u32 s26, s26, 32*1152\ns_add_u32 s27, s27, 1024")
        return out
    for sl in range(5):
        for x in loads(sl): a(x)
    a("v_lshrrev_b32 v13, 4, v2")
    a("v_bfe_u32 v14, v2, 2, 2")
    a("v_and_b32 v15, 1, v13")
    a("v_lshl_add_u32 v15, v15, 2, v14")
    a("v_lshrrev_b32 v14, 1, v15")
    a("v_lshrrev_b32 v13, 1, v13")
    a("v_lshl_add_u32 v15, v13, 4, v15")
    a("v_lshlrev_b32 v15, 7, v15")
    a("v_and_b32 v13, 3, v2")
    a("v_lshl_add_u32 v15, v13, 3, v15")
    a("v_add_u32 v15, s28, v15")
    for dt in range(4):
        a(f"v_xor_b32 v13, {dt}, v14")
        a(f"v_lshl_add_u32 v{9+dt}, v13, 5, v15")
    for r in range(80): a(f"v_mov_b32 v{16+r}, 0")
    def areads(sl, p):
        return [f"ds_read_b64_tr_b16 v[{areg(p,dt)+2*h}:{areg(p,dt)+2*h+1}], v{9+dt} offset:{sl*4096 + h*1024}" for dt in range(4) for h in range(2)]
    a("s_waitcnt vmcnt(41)")
    for x in areads(0, 0): a(x)
    a("s_mov_b32 s30, 6")
    a.raw(".p2align 6")
    a.label("L_g2_loop")
    for u in range(6):
        a("s_waitcnt vmcnt(32)")
        fill = areads((u+1) % 6, (u+1) & 1) + loads((u+5) % 6)
        a("s_waitcnt lgkmcnt(0)")
        k = 0
        for st in range(5):
            for dt in range(4):
                a(f"v_mfma_f32_16x16x32_bf16 v[{accr(st,dt)}:{accr(st,dt)+3}], v[{areg(u&1,dt)}:{areg(u&1,dt)+3}], v[{hreg(u,st)}:{hreg(u,st)+3}], v[{accr(st,dt)}:{accr(st,dt)+3}]")
                if k < len(fill): a(fill[k])
                k += 1
        if u == 0:
            a("s_cmp_eq_u32 s30, 1")
            a(f"s_cselect_b32 s18, 0, s18")
            a(f"s_cselect_b32 s22, 0, s22")
    a("s_sub_u32 s30, s30, 1")
    a("s_cmp_lg_u32 s30, 0")
    a("s_cbranch_scc1 L_g2_loop")
    a("s_waitcnt vmcnt(0) lgkmcnt(0)")
    a("v_lshlrev_b32 v4, 4, v2")
    a("v_add_u32 v5, s28, v4")
    for st in range(5):
        for dt in range(4):
            a(f"ds_write_b128 v5, v[{accr(st,dt)}:{accr(st,dt)+3}] offset:{(st*4+dt)*1024}")
    srd(a, 16, 14, XBYTES)
    a("s_lshl_b32 s29, s24, 10")
    a("v_add_u32 v5, s29, v4")
    a(f"v_add_u32 v6, {2*RW}, v5")
    a(f"v_add_u32 v7, {HB}, v5")
    a("v_and_b32 v8, 15, v2")
    a(f"v_lshlrev_b32 v9, 2, v8")
    a(f"v_add_u32 v9, {HB}, v9")
    a("v_mul_u32_u24 v10, 1152, v8")
    a("v_lshrrev_b32 v11, 4, v2")
    a("v_lshl_add_u32 v10, v11, 3, v10")
    a("s_mul_i32 s26, s34, 16*1152")
    a("s_lshl_b32 s27, s35, 7")
    a("s_add_u32 s26, s26, s27")
    a("s_lshl_b32 s27, s24, 5")
    a("s_add_u32 s26, s26, s27")
    a("v_add_u32 v10, s26, v10")
    a("s_waitcnt lgkmcnt(0)")
    a("s_barrier")
    for st in range(5):
        hw, sl = divmod(st, 2)
        b = 96 + 24*st
        a(f"ds_read_b128 v[{b}:{b+3}], v5 offset:{st*4096}")
        a(f"ds_read_b128 v[{b+4}:{b+7}], v5 offset:{RW + st*4096}")
        a(f"ds_read_b128 v[{b+8}:{b+11}], v6 offset:{st*4096}")
        a(f"ds_read_b128 v[{b+12}:{b+15}], v6 offset:{RW + st*4096}")
        a(f"ds_read_b128 v[{b+16}:{b+19}], v7 offset:{hw*CSZ + 8192 + sl*4096}")
        a(f"ds_read_b32 v{b+20}, v9 offset:{hw*CSZ + 16384 + sl*64}")
        a("s_waitcnt lgkmcnt(0)")
        for r in range(4): a(f"v_add_f32 v{b+r}, v{b+r}, v{b+4+r}")
        for r in range(4): a(f"v_add_f32 v{b+8+r}, v{b+8+r}, v{b+12+r}")
        for r in range(4): a(f"v_add_f32 v{b+r}, v{b+r}, v{b+8+r}")
        for r in range(4): a(f"v_fmac_f32 v{b+16+r}, v{b+20}, v{b+r}")
        a(f"v_cvt_pk_bf16_f32 v{b}, v{b+16}, v{b+17}")
        a(f"v_cvt_pk_bf16_f32 v{b+1}, v{b+18}, v{b+19}")
        a(f"s_mov_b32 s29, {st*16*1152}")
        a(f"buffer_store_dwordx2 v[{b}:{b+1}], v10, s[16:19], s29 offen")
    a("s_endpgm")
    a.label("L_g2_helper")
    a("s_sub_u32 s25, s24, 4")
    a(f"s_mul_i32 s41, s25, {CSZ}")
    a(f"s_add_u32 s41, s41, {HB}")
    a("s_lshl_b32 s26, s25, 1")
    a("s_add_u32 s26, s26, s34")
    a("s_lshl_b32 s26, s26, 4")
    srd(a, 16, 10, XBYTES)
    srd(a, 20, 8, XBYTES, ZT_OFF)
    srd(a, 28, 8, 16384, G_OFF)
    a("v_lshrrev_b32 v4, 3, v2")
    a("v_mul_u32_u24 v4, 1152, v4")
    a("v_and_b32 v5, 7, v2")
    a("v_lshl_add_u32 v4, v5, 4, v4")
    a("s_mul_i32 s27, s26, 1152")
    a("s_lshl_b32 s36, s35, 7")
    a("s_add_u32 s27, s27, s36")
    for i in range(4):
        a(f"s_add_u32 m0, s41, {i*1024}")
        a(f"s_add_u32 s36, s27, {i*8*1152}")
        a("buffer_load_dwordx4 v4, s[16:19], s36 offen lds")
    a("v_and_b32 v6, 15, v2")
    a("v_add_u32 v7, s26, v6")
    a("v_add_u32 v8, 16, v7")
    a("v_min_u32 v7, 2047, v7")
    a("v_min_u32 v8, 2047, v8")
    a("v_lshlrev_b32 v7, 2, v7")
    a("v_lshlrev_b32 v8, 2, v8")
    a("s_mov_b32 s36, 8192")
    a("buffer_load_dword v40, v7, s[28:31], 0 offen")
    a("buffer_load_dword v41, v8, s[28:31], 0 offen")
    a("buffer_load_dword v42, v7, s[28:31], s36 offen")
    a("buffer_load_dword v43, v8, s[28:31], s36 offen")
    a("v_lshrrev_b32 v9, 2, v2")
    a("v_lshlrev_b32 v9, 12, v9")
    a("v_and_b32 v10, 3, v2")
    a("v_lshl_add_u32 v9, v10, 4, v9")
    a("s_lshl_b32 s27, s35, 18")
    a("s_lshl_b32 s36, s26, 1")
    a("s_add_u32 s27, s27, s36")
    for i in range(4):
        a(f"s_add_u32 s36, s27, {i*16*4096}")
        a(f"buffer_load_dwordx4 v[{16+4*i}:{19+4*i}], v9, s[20:23], s36 offen")
    a("v_lshlrev_b32 v11, 4, v2")
    a("v_add_u32 v11, s41, v11")
    a("v_lshrrev_b32 v12, 2, v2")
    a("v_lshlrev_b32 v12, 6, v12")
    a("v_lshl_add_u32 v12, v10, 3, v12")
    a("v_add_u32 v12, s41, v12")
    a("v_lshrrev_b32 v13, 4, v2")
    a("v_lshlrev_b32 v13, 3, v13")
    a("v_lshl_add_u32 v13, v6, 7, v13")
    a("v_add_u32 v13, s41, v13")
    a("v_lshlrev_b32 v14, 2, v6")
    a("v_add_u32 v14, s41, v14")
    a("s_waitcnt vmcnt(0)")
    for i in range(4): a(f"ds_write_b128 v11, v[{16+4*i}:{19+4*i}] offset:{4096 + i*1024}")
    a("ds_write_b32 v14, v42 offset:16384")
    a("ds_write_b32 v14, v43 offset:16448")
    a("s_waitcnt lgkmcnt(0)")
    for sl in range(2):
        for dt in range(4):
            a(f"ds_read_b64_tr_b16 v[44:45], v12 offset:{4096 + dt*1024 + sl*32}")
            a(f"ds_read_b64 v[46:47], v13 offset:{sl*2048 + dt*32}")
            a("s_waitcnt lgkmcnt(0)")
            a("v_lshlrev_b32 v48, 16, v44\nv_and_b32 v49, 0xffff0000, v44\nv_lshlrev_b32 v50, 16, v45\nv_and_b32 v51, 0xffff0000, v45")
            a("v_lshlrev_b32 v52, 16, v46\nv_and_b32 v53, 0xffff0000, v46\nv_lshlrev_b32 v54, 16, v47\nv_and_b32 v55, 0xffff0000, v47")
            for r in range(4): a(f"v_mul_f32 v{48+r}, v{48+r}, v{52+r}")
            for r in range(4): a(f"v_mul_f32 v{48+r}, v{48+r}, v{40+sl}")
            a(f"ds_write_b128 v11, v[48:51] offset:{8192 + sl*4096 + dt*1024}")
    a("s_waitcnt lgkmcnt(0)")
    a("s_barrier")
    a.label("L_g2_exit")
    a("s_endpgm")

def main(out):
    a = Asm()
    a.raw("; @launch kernel=prep_kernel grid=(256,1,1) block=(256,1,1) lds=20480")
    a.raw("; @launch kernel=gemm1_kernel grid=(256,1,1) block=(256,1,1) lds=143744")
    a.raw(f"; @launch kernel=conv_kernel grid=(144,1,1) block=(256,1,1) lds={4*CSZ}")
    a.raw(f"; @launch kernel=gemm2_kernel grid=(240,1,1) block=(448,1,1) lds={HB+3*CSZ}")
    a.raw('.amdgcn_target "amdgcn-amd-amdhsa--gfx950"')
    k_prep(a); k_gemm1(a); k_conv(a); k_gemm2(a)
    kernel_desc(a, "prep_kernel", 128, 128)
    kernel_desc(a, "gemm1_kernel", 256+152, 256)
    kernel_desc(a, "conv_kernel", 128, 128)
    kernel_desc(a, "gemm2_kernel", 256, 256)
    open(out, "w").write(a.text())
if __name__ == "__main__":
    main(sys.argv[1] if len(sys.argv) > 1 else "gated_mix__ssm_conv_h3__glu_gated_glu__prompt.s")
```

```python
import sys, os
from asmlib import *

S, D, F = 2048, 576, 4608
XBYTES = S*D*2
WBYTES = D*F*2
H_OFF, H_BYTES = 0, S*F*2
KVT_OFF = 0x1200000
ZT_OFF = 0x1440000
G_OFF = 0x1680000
FLAG_OFF = 0x1690000
WD_OFF = 0x1700000
NLOG2E = 0xbfb8aa3b
HST = 147456
BIG = 0x7ffffff0
STAMP = int(os.environ.get("STAMP", "0"))
LEAD = int(os.environ.get("LEAD", "2"))
SC = os.environ.get("SC", "sc1")
DBG_OFF = 0x2000000
def stamp(a, i):
    if STAMP: a(f"s_memtime s[{64+2*i}:{65+2*i}]")
def stamp_rt(a, i):
    if STAMP: a(f"s_memrealtime s[{64+2*i}:{65+2*i}]")
def stamp_flush(a, n, region, wave="s24"):
    if not STAMP: return
    a("s_waitcnt vmcnt(0) lgkmcnt(0)")
    a(f"s_memtime s[{64+2*n}:{65+2*n}]")
    a(f"s_memrealtime s[{66+2*n}:{67+2*n}]")
    a(f"s_load_dwordx2 s[60:61], s[0:1], 104")
    a("s_waitcnt lgkmcnt(0)")
    srd(a, 56, 60, 0x40000, DBG_OFF + region*0x40000)
    a(f"s_lshl_b32 s60, s2, 3\ns_add_u32 s60, s60, {wave}\ns_lshl_b32 s60, s60, 7")
    a("v_mov_b32 v1, s60")
    a("s_mov_b64 exec, 1")
    for i in range(n+2):
        a(f"v_mov_b32 v2, s{64+2*i}")
        a(f"buffer_store_dword v2, v1, s[56:59], 0 offen offset:{4*i}")

WSLOT = 36864
XB = 3*WSLOT
PB = XB + 32768
PBV = PB + 10528
def accg(ft, rt): return 64 + 16*ft + 4*rt
def accu(ft, rt): return ("a", 16*ft + 4*rt) if ft < 6 else ("v", 208 + 16*(ft-6) + 4*rt)
def xreg(t, ks, rt): return 96 + 32*(t & 1) + 16*ks + 4*rt
NWR = 12
def wreg(n): return 160 + 4*(n % NWR)

def k1(a):
    kernel_begin(a, "gemm1_kernel")
    a("s_cmp_ge_u32 s2, 256")
    a("s_cbranch_scc1 L_g1_exit")
    stamp_rt(a, 0); stamp(a, 1)
    a("s_load_dwordx8 s[4:11], s[0:1], 0")
    a("s_load_dwordx8 s[44:51], s[0:1], 56")
    a("s_load_dwordx2 s[52:53], s[0:1], 32")
    a("s_load_dwordx2 s[54:55], s[0:1], 104")
    a("v_lshrrev_b32 v1, 6, v0")
    a("v_and_b32 v2, 63, v0")
    a("v_readfirstlane_b32 s24, v1")
    TLBW = int(os.environ.get("TLBW", "1"))
    if TLBW:
        a("v_lshrrev_b32 v40, 2, v2")
        a("v_cmp_gt_u32 vcc, 48, v2")
        a("v_mov_b32 v41, 13")
        a("v_and_b32 v44, 3, v2")
        a("v_cndmask_b32 v40, v41, v40, vcc")
        a("v_lshlrev_b32 v41, 3, v40")
        a.vmem("global_load_dwordx2 v[42:43], v41, s[0:1]", "PTR")
        a("v_and_b32 v45, 15, v2")
        a("v_cndmask_b32 v44, v45, v44, vcc")
        a("v_lshlrev_b32 v44, 21, v44")
        a("v_lshlrev_b32 v45, v40, 1")
        a("v_mov_b32 v41, 0")
        a(f"v_mov_b32 v39, {XBYTES-4}")
        a(f"v_and_b32 v38, {0x817}, v45")
        a("v_cmp_ne_u32 vcc, 0, v38")
        a(f"v_and_b32 v38, {0x380}, v45")
        a("s_nop 0")
        a("v_cndmask_b32 v41, v41, v39, vcc")
        a("v_cmp_ne_u32 vcc, 0, v38")
        a(f"v_mov_b32 v39, {WBYTES-4}")
        a(f"v_and_b32 v38, {0x2000}, v45")
        a("v_cndmask_b32 v41, v41, v39, vcc")
        a("v_cmp_ne_u32 vcc, 0, v38")
        a(f"v_mov_b32 v39, {0x2000000}")
        a("s_nop 0")
        a("v_cndmask_b32 v41, v41, v39, vcc")
        a("v_min_u32 v44, v44, v41")
    a("s_and_b32 s33, s2, 7")
    a("s_lshr_b32 s34, s2, 3")
    a("s_and_b32 s35, s34, 3")
    a("s_lshr_b32 s36, s34, 2")
    a("s_lshl_b32 s37, s33, 2")
    a("s_add_u32 s37, s37, s35")
    a("s_mul_i32 s26, s37, 144")
    a("s_lshl_b32 s25, s36, 8")
    a("s_lshl_b32 s35, s24, 6")
    a("s_add_u32 s25, s25, s35")
    a("v_lshrrev_b32 v46, 3, v2")
    a("v_mul_u32_u24 v46, 1152, v46")
    a("v_and_b32 v47, 7, v2")
    a("v_lshrrev_b32 v48, 4, v2")
    a("v_xor_b32 v47, v47, v48")
    a("v_lshl_add_u32 v12, v47, 4, v46")
    a("v_xor_b32 v47, 4, v47")
    a("v_lshl_add_u32 v13, v47, 4, v46")
    a("v_add_u32 v13, 8*1152, v13")
    a("s_and_b32 s35, s24, 1")
    a("s_lshr_b32 s36, s24, 1")
    a("s_mul_i32 s27, s35, 32*9216")
    a("s_lshl_b32 s37, s26, 1")
    a("s_add_u32 s27, s27, s37")
    a("s_mul_i32 s30, s24, 9216")
    a("s_mul_i32 s28, s25, 1152")
    a("s_lshl_b32 s31, s24, 13")
    a(f"s_add_u32 s31, s31, {XB}")
    a(f"s_add_u32 s41, s30, {2*WSLOT}")
    a("v_mov_b32 v46, v2")
    for j in range(9):
        a("v_mul_u32_u24 v47, 3641, v46")
        a("v_lshrrev_b32 v47, 16, v47")
        a("v_mul_u32_u24 v49, 288, v47")
        a("v_lshlrev_b32 v50, 4, v46")
        a("v_sub_u32 v49, v50, v49")
        a("v_and_b32 v50, 12, v47")
        a("v_and_b32 v51, 3, v47")
        a("v_lshl_add_u32 v50, v50, 1, v51")
        a("v_lshrrev_b32 v51, 4, v47")
        a("v_lshl_add_u32 v50, v51, 2, v50")
        a("v_mul_u32_u24 v50, 9216, v50")
        a(f"v_add_u32 v{3+j}, v50, v49")
        if j < 8: a("v_add_u32 v46, 64, v46")
    a("s_waitcnt lgkmcnt(0)")
    srd(a, 12, 4, XBYTES)
    a("s_cmp_eq_u32 s36, 0")
    a("s_cselect_b32 s16, s44, s46")
    a("s_cselect_b32 s17, s45, s47")
    a(f"s_mov_b32 s18, {WBYTES}")
    a("s_mov_b32 s19, 0x20000")

    ROT = int(os.environ.get("ROT", "0"))
    if ROT:
        a("s_lshr_b32 s96, s34, 2\ns_and_b32 s97, s34, 3")
        a(f"s_mul_i32 s97, s97, {ROT-1}\ns_add_u32 s96, s96, s97")
        a("s_cmp_ge_u32 s96, 9\ns_cselect_b32 s97, 9, 0\ns_sub_u32 s96, s96, s97")
        a("s_cmp_ge_u32 s96, 9\ns_cselect_b32 s97, 9, 0\ns_sub_u32 s96, s96, s97")
    else:
        a("s_mov_b32 s96, 0")
    a("s_mov_b32 s97, s96")
    def I(s_, k="v"): return (k, lambda s_=s_: a(s_))
    def V(s_, tag=None, k="d"): return (k, lambda s_=s_, tag=tag: a.vmem(s_, tag))
    def Ld(s_, tag=None): return ("d", lambda s_=s_, tag=tag: a.lds(s_, tag))
    def Fn(f, k="s"): return (k, f)
    def w_items(t):
        o = [I("s_mul_i32 s29, s96, 64*9216", "s"), I("s_add_u32 s29, s29, s27", "s"),
             I("s_add_u32 s96, s96, 1\ns_cmp_eq_u32 s96, 9\ns_cselect_b32 s96, 0, s96", "s")]
        for j in range(9):
            o.append(I(f"s_add_u32 m0, s30, {(t%3)*WSLOT + j*1024}", "s"))
            o.append(V(f"buffer_load_dwordx4 v{3+j}, s[16:19], s29 offen lds", ("W", t), "D"))
        return o
    def x_items(t, base="s31"):
        o = [I("s_lshl_b32 s99, s97, 7", "s"), I("s_add_u32 s99, s99, s28", "s"),
             I("s_add_u32 s97, s97, 1\ns_cmp_eq_u32 s97, 9\ns_cselect_b32 s97, 0, s97", "s")]
        for i in range(8):
            if i and i % 2 == 0: o.append(I(f"s_add_u32 s99, s99, {16*1152}", "s"))
            o.append(I(f"s_add_u32 m0, {base}, {i*1024}", "s"))
            o.append(V(f"buffer_load_dwordx4 v{12+(i&1)}, s[12:15], s99 offen lds", ("X", t), "D"))
        return o
    def run_now(items):
        for k, f in items:
            if k == "D": a("s_nop 0")
            f()
    def tlb_touch():
        a.wait_vm("PTR")
        a("v_add_co_u32 v42, vcc, v42, v44")
        a("s_nop 1")
        a("v_addc_co_u32 v43, vcc, 0, v43, vcc")
        a.vmem("global_load_dword a229, v[42:43], off")
    if TLBW == 2: tlb_touch()
    run_now(x_items(0)); run_now(w_items(0))
    if TLBW == 1: tlb_touch()
    srd(a, 20, 54, 0x2000000, 0)
    a("v_and_b32 v46, 15, v2")
    a("v_bfe_u32 v47, v2, 1, 3")
    a("v_xor_b32 v47, v47, v48")
    a("v_lshlrev_b32 v49, 7, v46")
    for ks in range(2):
        a(f"v_xor_b32 v50, {4*ks}, v47")
        a("v_lshl_add_u32 v50, v50, 4, v49")
        a(f"v_add_u32 v{14+ks}, s31, v50")
        a(f"v_add_u32 v{62+ks}, s41, v50")
    a("v_lshrrev_b32 v49, 2, v2")
    a("v_mul_u32_u24 v49, 288, v49")
    a("v_and_b32 v50, 3, v2")
    a("v_lshl_add_u32 v16, v50, 3, v49")
    a(f"v_add_u32 v17, {WSLOT}, v16")
    a(f"v_add_u32 v18, {2*WSLOT}, v16")
    a("v_and_b32 v49, 1, v48")
    a(f"v_mul_u32_u24 v49, {HST}, v49")
    a("v_lshrrev_b32 v51, 1, v48")
    a("v_lshl_add_u32 v49, v51, 8, v49")
    a("v_lshl_add_u32 v19, v46, 4, v49")
    a("s_lshr_b32 s37, s25, 4")
    a(f"s_mul_i32 s37, s37, {HST}")
    a("s_lshl_b32 s38, s26, 5")
    a("s_add_u32 s37, s37, s38")
    a("s_add_u32 s38, s37, 4096")
    a(f"s_add_u32 s39, s37, {2*HST}")
    a(f"s_add_u32 s40, s37, {2*HST+4096}")
    a(f"s_mov_b32 s32, {NLOG2E:#x}")
    a("s_mul_i32 s63, s24, 5120")
    a(f"s_add_u32 s63, s63, {PB+288}")
    run_now(x_items(1, "s41"))
    def sc(txt): return [I(x, "s") for x in txt.split("\n")]
    def vs(txt): return [I(x, "v") for x in txt.split("\n")]
    flags = set()
    def setf(n): return ("z", lambda: flags.add(n))
    def need(n):
        def f(): assert n in flags, n
        return ("z", f)
    def kv_setup():
        o = vs("v_lshrrev_b32 v48, 4, v2\nv_and_b32 v46, 15, v2\nv_and_b32 v50, 3, v2\nv_bfe_u32 v21, v2, 2, 2\nv_lshl_add_u32 v21, v48, 3, v21\nv_mul_u32_u24 v21, 288, v21\nv_lshl_add_u32 v21, v50, 3, v21")
        o += sc(f"s_lshl_b32 s98, s24, 5\ns_add_u32 s98, s98, {PB}")
        o += vs("v_add_u32 v21, s98, v21")
        o += sc("s_and_b32 s42, s33, 3\ns_lshr_b32 s43, s33, 2\ns_lshl_b32 s43, s43, 5\ns_add_u32 s43, s43, s34\ns_lshl_b32 s43, s43, 5\ns_mul_i32 s42, s42, 144")
        o.append(I("s_cmp_eq_u32 s36, 0\ns_cselect_b32 s56, s6, s8\ns_cselect_b32 s57, s7, s9\ns_cselect_b32 s100, 3, 0", "s"))
        o += sc(f"s_mov_b32 s58, {XBYTES}\ns_mov_b32 s59, 0x20000")
        o += sc("s_sub_u32 s100, s43, s100\ns_mul_i32 s100, s100, 1152\ns_lshl_b32 s98, s42, 1\ns_add_u32 s100, s100, s98\ns_mul_i32 s98, s35, 5*64")
        o += vs("v_add_u32 v49, s98, v2")
        for j in range(5):
            o += vs(f"v_mul_u32_u24 v51, 3641, v49\nv_lshrrev_b32 v51, 16, v51\nv_mul_u32_u24 v51, 1152-288, v51\nv_lshl_add_u32 v51, v49, 4, v51\nv_add_u32 v{28+j}, s100, v51")
            if j < 4: o += vs("v_add_u32 v49, 64, v49")
        o += sc(f"s_mov_b32 s4, s10\ns_mov_b32 s5, s11\ns_mov_b32 s6, {D*4*2}\ns_mov_b32 s7, 0x20000")
        o += sc("s_lshl_b32 s98, s24, 4\ns_add_u32 s98, s98, s42")
        o += vs("v_add_u32 v49, s98, v46\nv_lshlrev_b32 v33, 3, v49\nv_lshlrev_b32 v20, 12, v49\nv_lshl_add_u32 v20, v48, 4, v20")
        o += sc(f"s_lshl_b32 s98, s43, 1\ns_add_u32 s98, s98, {KVT_OFF}")
        o += vs("v_add_u32 v20, s98, v20")
        o.append(I(f"s_cmp_eq_u32 s24, 0\ns_mov_b32 s42, {BIG}\ns_cselect_b32 s42, {2*64*4096}, s42", "s"))
        o += sc(f"s_mov_b32 s43, {64*4096}")
        o.append(setf("kvset"))
        return o
    def kv_loads():
        o = [need("kvset"), need("rlout1")]
        for j in range(5):
            o.append(I(f"s_add_u32 m0, s63, {j*1024}", "s"))
            o.append(V(f"buffer_load_dwordx4 v{28+j}, s[56:59], 0 offen lds", "KV", "D"))
        for j in range(3): o.append(V(f"buffer_load_dwordx2 v[{22+2*j}:{23+2*j}], v33, s[4:7], 0 offen offset:{512*j}", "KV"))
        return o

    def read_x(t, ks, rt, base=14):
        r = xreg(t, ks, rt)
        a.lds(f"ds_read_b128 a[{r}:{r+3}], v{base+ks} offset:{2048*rt}", ("X", t))
    units = []
    for t in range(7):
        for ft in range(9):
            for mat in range(2): units.append((ft, mat, [(t, 0), (t, 1)]))
    for ft in range(9):
        for mat in range(2): units.append((ft, mat, [(7, 0), (7, 1), (8, 0), (8, 1)]))
    frags = []
    ufirst = []
    for u, (ft, mat, kk) in enumerate(units):
        ufirst.append(len(frags))
        for (t, ks) in kk: frags.append((u, ft, mat, t, ks))
    ufirst.append(len(frags))
    def read_w(n, h):
        u, ft, mat, t, ks = frags[n]
        off = mat*18432 + (32*ks + 16*h)*288 + ft*32
        a.lds(f"ds_read_b64_tr_b16 a[{wreg(n)+2*h}:{wreg(n)+2*h+1}], v{16 + t%3} offset:{off}", ("Wf", n))

    NOP = I("s_nop 0", "t")
    def kv_task(task):
        o = []
        co = task*128
        for j in range(3): o.append(Ld(f"ds_read_b64_tr_b16 v[{28+2*j}:{29+2*j}], v21 offset:{co + 4*j*288}", "kv"))
        for j in range(2): o.append(Ld(f"ds_read_b64_tr_b16 v[{34+2*j}:{35+2*j}], v21 offset:{co + 4*j*288 + (PBV-PB)}", "kv"))
        w0, w1 = 22+2*task, 23+2*task
        o.append(I(f"v_alignbit_b32 v38, v{w0}, v{w0}, 16"))
        o.append(I(f"v_alignbit_b32 v39, v{w1}, v{w1}, 16"))
        o += [("skip", None)]*6
        o.append(Fn(lambda: a.wait_lg("kv")))
        for j in range(5): o.append(I(f"v_alignbit_b32 v{40+j}, v{29+j}, v{28+j}, 16"))
        burst = []
        for s_ in range(8):
            src = (40 + s_//2) if s_ % 2 == 0 else (29 + s_//2)
            burst.append(f"v_dot2_f32_bf16 v{45+s_}, v{src}, v39, 0")
        for s_ in range(8):
            src = (41 + s_//2) if s_ % 2 == 0 else (30 + s_//2)
            burst.append(f"v_dot2_f32_bf16 v{45+s_}, v{src}, v38, v{45+s_}")
        o.append(I("\n".join(burst), "t"))
        for s_ in range(8):
            o.append(I(f"v_lshlrev_b32 v{53+s_}, 16, v{34+s_//2}" if s_ % 2 == 0 else f"v_and_b32 v{53+s_}, 0xffff0000, v{34+s_//2}"))
        for s_ in range(8): o.append(I(f"v_mul_f32 v{45+s_}, v{45+s_}, v{53+s_}"))
        for j in range(4): o.append(I(f"v_cvt_pk_bf16_f32 v{40+j}, v{52-2*j}, v{51-2*j}"))
        so = ["0", "s43", "s42"][task]
        o.append(V(f"buffer_store_dwordx4 v[40:43], v20, s[20:23], {so} offen {SC}"))
        return o
    DOTK = "v"
    def gate_loads():
        o = []
        o.append(Fn(lambda: srd(a, 56, 50, D*2)))
        o.append(I("s_lshl_b32 s100, s2, 3\ns_lshl_b32 s101, s24, 1\ns_add_u32 s100, s100, s101", "s"))
        o.append(I("v_lshrrev_b32 v20, 5, v2"))
        o.append(I("v_add_u32 v20, s100, v20"))
        o.append(I("v_mul_u32_u24 v21, 1152, v20"))
        o.append(I("v_and_b32 v22, 31, v2"))
        o.append(I("v_lshlrev_b32 v23, 4, v22"))
        o.append(I("v_add_u32 v21, v21, v23"))
        o.append(I("v_cmp_gt_u32 vcc, 8, v22"))
        o.append(I(f"v_mov_b32 v24, {BIG}"))
        o.append(I("v_lshlrev_b32 v20, 3, v20"))
        o.append(I("v_cndmask_b32 v25, v24, v21, vcc"))
        o.append(I("v_cmp_eq_u32 vcc, 0, v22"))
        o.append(I(f"v_add_u32 v20, {G_OFF}, v20"))
        for j in range(2):
            o.append(V(f"buffer_load_dwordx4 v[{28+4*j}:{31+4*j}], v21, s[12:15], 0 offen offset:{512*j}", "G"))
            o += [("skip", None)]*10
            o.append(V(f"buffer_load_dwordx4 v[{40+4*j}:{43+4*j}], v23, s[56:59], 0 offen offset:{512*j}", "G"))
            o += [("skip", None)]*10
        o.append(I("v_cndmask_b32 v20, v24, v20, vcc"))
        o.append(V("buffer_load_dwordx4 v[36:39], v25, s[12:15], 0 offen offset:1024", "G"))
        o.append(V("buffer_load_dwordx4 v[48:51], v23, s[56:59], 0 offen offset:1024", "G"))
        return o
    def gate_compute():
        o = [Fn(lambda: a.wait_vm("G"))]
        o.append(I("\n".join(["v_dot2_f32_bf16 v22, v28, v40, 0"] + [f"v_dot2_f32_bf16 v22, v{28+j}, v{40+j}, v22" for j in range(1, 12)]), "t"))
        o.append(I("s_nop 2", "t"))
        for sh in (8, 4, 2, 1):
            o.append(I(f"s_nop 1\nv_add_f32_dpp v22, v22, v22 row_ror:{sh} row_mask:0xf bank_mask:0xf", "t"))
        o.append(I("v_mov_b32 v23, v22"))
        o.append(I("s_nop 1\nv_permlane16_swap_b32 v22, v23", "t"))
        o.append(I("v_add_f32 v22, v22, v23"))
        o.append(I("v_cvt_pk_bf16_f32 v22, v22, v22"))
        o.append(I("v_lshlrev_b32 v22, 16, v22"))
        o.append(I("v_mul_f32 v22, s32, v22"))
        o.append(I("v_exp_f32 v22, v22\ns_nop 0", "t"))
        o.append(I("v_add_f32 v22, 1.0, v22"))
        o.append(I("v_rcp_f32 v22, v22\ns_nop 0", "t"))
        o.append(I("v_cvt_pk_bf16_f32 v22, v22, v22"))
        o.append(I("v_lshlrev_b32 v22, 16, v22"))
        o.append(I("v_sub_f32 v23, 1.0, v22"))
        o.append(I("v_cvt_pk_bf16_f32 v23, v23, v23"))
        o.append(I("v_lshlrev_b32 v23, 16, v23"))
        o.append(V(f"buffer_store_dwordx2 v[22:23], v20, s[20:23], 0 offen {SC}"))
        return o
    def rl_setup():
        o = sc(f"s_mov_b32 s44, s48\ns_mov_b32 s45, s49\ns_mov_b32 s46, {WBYTES}\ns_mov_b32 s47, 0x20000")
        o.append(I("v_mov_b32 v59, v2"))
        for j in range(5):
            o += vs(f"v_mul_u32_u24 v60, 7282, v59\nv_lshrrev_b32 v60, 16, v60\nv_mul_u32_u24 v60, 1152-144, v60\nv_lshl_add_u32 v{52+j}, v59, 4, v60")
            if j < 4: o.append(I("v_add_u32 v59, 64, v59"))
        o += vs("v_lshlrev_b32 v57, 4, v2\nv_and_b32 v59, 8, v2\nv_lshlrev_b32 v59, 27, v59\nv_add_u32 v58, v57, v59")
        o += vs("v_lshrrev_b32 v59, 4, v2\nv_bfe_u32 v61, v2, 2, 2\nv_lshl_add_u32 v61, v59, 3, v61\nv_mul_u32_u24 v61, 144, v61\nv_and_b32 v59, 3, v2\nv_lshl_add_u32 v61, v59, 3, v61\nv_add_u32 v61, s63, v61")
        o.append(setf("rlout-1"))
        return o
    def rl_dma(rnd):
        o = [need(f"rlout{rnd-1}")] + sc(f"s_lshl_b32 s60, s2, 2\ns_add_u32 s60, s60, s24\ns_add_u32 s60, s60, {1024*rnd}")
        o += sc("s_lshr_b32 s61, s60, 3\ns_and_b32 s60, s60, 7")
        o += sc("s_mul_i32 s62, s61, 32*1152\ns_mul_i32 s25, s60, 144\ns_add_u32 s62, s62, s25")
        tailsc = sc("s_mul_i32 s25, s60, 72\ns_lshr_b32 s26, s61, 1\ns_add_u32 s25, s25, s26\ns_mul_i32 s25, s25, 9216")
        tailsc += sc(f"s_add_u32 s25, s25, {WD_OFF}\ns_and_b32 s3, s61, 1\ns_lshl_b32 s41, s3, 7\ns_add_u32 s26, s25, s41\ns_add_u32 s26, s26, 8192")
        tailsc += sc("s_lshl_b32 s41, s3, 12\ns_add_u32 s25, s25, s41")
        tailsc.append(I(f"s_cmp_lt_u32 s61, 144\ns_cselect_b32 s25, s25, {0x3ffffff0}\ns_cselect_b32 s26, s26, {0x3ffffff0}", "s"))
        for j in range(5):
            if j: o += tailsc[3*(j-1):3*j]
            o.append(I(f"s_add_u32 m0, s63, {j*1024}", "s"))
            o.append(V(f"buffer_load_dwordx4 v{52+j}, s[44:47], s62 offen lds", "RL", "D"))
        return o
    def rl_out(rnd):
        o = [Fn(lambda: a.wait_vm("RL"))]
        for j in range(5):
            for h in range(2):
                o.append(Ld(f"ds_read_b64_tr_b16 a[{208+4*j+2*h}:{209+4*j+2*h}], v61 offset:{4*h*144 + j*32}", "rl"))
        o += [("skip", None)]*6
        o.append(Fn(lambda: a.wait_lg("rl")))
        for j in range(4):
            o.append(V(f"buffer_store_dwordx4 a[{208+4*j}:{211+4*j}], v57, s[20:23], s25 offen offset:{j*1024} {SC}"))
            o += [("skip", None)]*(8 if rnd == 0 else 1)
        o.append(V(f"buffer_store_dwordx4 a[224:227], v58, s[20:23], s26 offen {SC}"))
        o.append(setf(f"rlout{rnd}"))
        return o
    def misc():
        o = [Fn(lambda: srd(a, 56, 52, XBYTES))]
        o += sc("s_lshl_b32 s100, s2, 2\ns_add_u32 s100, s100, s24\ns_mul_i32 s100, s100, 18*128")
        o.append(I("v_min_u32 v20, 17, v2"))
        o.append(I("v_lshlrev_b32 v20, 7, v20"))
        o.append(V("buffer_load_dword a228, v20, s[56:59], s100 offen"))
        o.append(Fn(lambda: srd(a, 56, 54, 576*4, FLAG_OFF)))
        o.append(I("s_lshl_b32 s100, s2, 10", "s"))
        o.append(I("v_lshlrev_b32 v21, 2, v0"))
        o.append(I("v_mov_b32 v22, 0"))
        o.append(V(f"buffer_store_dword v22, v21, s[56:59], s100 offen {SC}"))
        return o
    def xr_items(t, base=14):
        o = [Fn(lambda: a.wait_vm(("X", t)))]
        for ks in range(2):
            for rt in range(4): o.append(Fn(lambda ks=ks, rt=rt: read_x(t, ks, rt, base), "x"))
        return o
    def xw(t): return [Fn(lambda: a.wait_lg(("X", t)))]
    M = {}; SS = {t: [] for t in range(7)}
    SK = lambda n: [("skip", None)]*n
    def groups(items):
        g = []; cur = []
        for it in items:
            cur.append(it)
            if it[0] in "dD": g.append(cur); cur = []
        if cur: g[-1] += cur
        return g
    def weave(main, extra, every, start=0):
        gm, ge = groups(main), groups(extra); o = []
        for i, g in enumerate(gm):
            o += g
            if ge and i >= start and (i - start) % every == every - 1: o += ge.pop(0)
        for g in ge: o += g
        return o
    def base(t): return xr_items(t+1) + w_items(t+2)[:7] + xw(t+1) + x_items(t+2) + w_items(t+2)[7:]
    M[0] = w_items(1) + x_items(2) + xr_items(1, 62) + xw(1) + w_items(2)
    for t in range(1, 7): M[t] = base(t)
    if not os.environ.get("NOSIDE"):
        SS[0] = rl_setup() + SK(30) + misc()
        M[1] = weave(base(1), rl_dma(0), 3)
        SS[1] = gate_loads()
        SS[2] = SK(24) + rl_out(0) + gate_compute()
        M[3] = weave(base(3), rl_dma(1), 1)
        SS[3] = kv_setup() + rl_out(1)
        M[4] = weave(base(4), kv_loads(), 1)
        SS[5] = kv_task(0) + kv_task(1)
        SS[6] = kv_task(2)
    def sig(ft):
        o = []
        regs = [accg(ft, rt) + r for rt in range(4) for r in range(4)]
        for half in (regs[:8], regs[8:]):
            o += [I(f"v_mul_f32 v{r}, s32, v{r}") for r in half]
            o += [I(f"v_exp_f32 v{r}, v{r}", "t") for r in half]
            o += [I(f"v_add_f32 v{r}, 1.0, v{r}") for r in half]
            o += [I(f"v_rcp_f32 v{r}, v{r}", "t") for r in half]
        return o
    def fin(ft):
        o = []
        for rp in range(2):
            for rt in (2*rp, 2*rp+1):
                k, ub = accu(ft, rt); g = accg(ft, rt)
                if k == "a":
                    tb = 20 + 4*(rt & 1)
                    o += [I(f"v_accvgpr_read_b32 v{tb+r}, a{ub+r}") for r in range(4)]
                    ub = tb
                o += [I(f"v_mul_f32 v{g+r}, v{g+r}, v{ub+r}") for r in range(4)]
            g0, g1 = accg(ft, 2*rp), accg(ft, 2*rp+1)
            o.append(I(f"v_cvt_pk_bf16_f32 v{g0}, v{g0}, v{g0+1}"))
            o.append(I(f"v_cvt_pk_bf16_f32 v{g0+1}, v{g0+2}, v{g0+3}"))
            o.append(I(f"v_cvt_pk_bf16_f32 v{g0+2}, v{g1}, v{g1+1}"))
            o.append(I(f"v_cvt_pk_bf16_f32 v{g0+3}, v{g1+2}, v{g1+3}"))
            o.append(I(f"s_nop 0\nv_permlane16_swap_b32 v{g0}, v{g0+2}", "t"))
            o.append(I(f"v_permlane16_swap_b32 v{g0+1}, v{g0+3}", "t"))
            so = 37 + 2*rp + (1 if ft == 8 else 0)
            o.append(V(f"buffer_store_dwordx4 v[{g0}:{g0+3}], v19, s[20:23], s{so} offen offset:{(ft%8)*512} {SC}"))
        return o

    stamp(a, 2)
    a.wait_vm(("W", 0))
    stamp(a, 3)
    for ks in range(2):
        for rt in range(4): read_x(0, ks, rt)
    if STAMP: a.wait_all_lg()
    a("s_barrier")
    AHEAD = 4
    nread = 0
    def issue_read():
        nonlocal nread
        read_w(nread // 2, nread % 2); nread += 1
    for _ in range(2*AHEAD): issue_read()
    open_stage = 0
    NU = len(units)
    tail_q = []
    TAILCAP = int(os.environ.get("TAILCAP", "5"))
    GEND = 16*8 + 2
    cost = {"v": 1, "t": 2, "d": 2, "D": 2, "s": 1, "x": 2, "z": 0}
    mtot = {}
    def unit_wait(u):
        kk = units[u][2]
        assert nread >= 2*ufirst[u+1], (u, nread)
        n0 = len(a.L)
        a.wait_lg(*[("Wf", n) for n in range(ufirst[u], ufirst[u+1])], *[("X", tt) for tt, _ in kk])
        return len(a.L) - n0
    unit_wait(0)
    for u, (ft, mat, kk) in enumerate(units):
        tail = u >= 126
        t = kk[0][0]
        iu = u % 18
        nm = 4*len(kk)
        if tail:
            if mat == 1: tail_q += sig(ft)
            elif ft > 0: tail_q += fin(ft-1)
        elif iu == 0:
            mtot[t] = sum(1 for k, _ in M[t] if k in "dD"); mdone = 0
            if t: assert not SS[t-1], (t, len(SS[t-1]))
        ahead = 8 if u + 1 >= 126 else AHEAD
        target = min(2*(ufirst[u+1] + ahead), 2*len(frags), 2*(ufirst[u] + NWR))
        m = 0
        for rt in range(4):
            for (tt, ks) in kk:
                n = ufirst[u] + kk.index((tt, ks))
                if mat == 0: k, b = "v", accg(ft, rt)
                else: k, b = accu(ft, rt)
                d = vr(b, 4, k)
                c = "0" if (tt == 0 and ks == 0) else d
                xr = xreg(tt, ks, rt)
                a(f"v_mfma_f32_16x16x32_bf16 {d}, a[{wreg(n)}:{wreg(n)+3}], a[{xr}:{xr+3}], {c}")
                m += 1
                g = iu*8 + m - 1
                slots = TAILCAP + 1 if tail else 3
                pos = 0
                mem = False; valu = False
                if not tail and iu == 16 and m == 4:
                    assert not M[t], (t, len(M[t]))
                    stamp(a, 4 + t)
                    a.wait_all_lg()
                    if t < 6: a.wait_vm(("W", t+1), "KV")
                    else: a.wait_vm(("W", 7), ("W", 8))
                    a("s_barrier")
                    open_stage = t + 1 if t < 6 else 8
                    continue
                if u == 125 and m % 2 == 0:
                    if m == 2: a.wait_vm(("X", 8))
                    read_x(8, 0, m//2-1); read_x(8, 1, m//2-1); pos = 3; mem = True
                if m == nm and u + 1 < NU: pos += unit_wait(u+1)
                left = nm - m + 1
                need_ = target - nread
                nr = 2 if need_ > left + 6 else (1 if need_*2 > left else 0)
                if u == 125 and m % 2 == 1: nr = 2
                for _ in range(nr):
                    if not (mem and nr == 1) and nread < target and frags[nread//2][3] <= open_stage and pos < 3:
                        issue_read(); pos += 2; mem = True
                def fits(k_):
                    if k_ == "z": return True
                    if k_ in "dDx": return (not mem) and (not valu) and pos + 2 <= slots
                    if k_ in "vt": return max(pos, 1) + cost[k_] <= slots
                    return pos + 1 <= slots
                def put(k_, f):
                    nonlocal pos, mem, valu
                    f()
                    if k_ in "vt": pos = max(pos, 1); valu = True
                    if k_ in "dDx": mem = True
                    pos += cost[k_]
                if not tail:
                    first = True
                    while M[t]:
                        k_, f = M[t][0]
                        if not fits(k_): break
                        if k_ in "dD":
                            if mdone + 1 > mtot[t] * (g + 4) / ((GEND - 6) if t < 6 else 80) or (k_ == "D" and not first): break
                            mdone += 1
                        M[t].pop(0); put(k_, f); first = False
                q = tail_q if tail else SS[t]
                while q:
                    k_, f = q[0]
                    if k_ == "skip": q.pop(0); break
                    if not fits(k_): break
                    q.pop(0); put(k_, f)
    stamp(a, 12)
    a("s_nop 7")
    print("exposed tail items:", len(tail_q), file=sys.stderr)
    for k_, f in tail_q + fin(8): f()
    stamp(a, 13)
    stamp_flush(a, 14, 0)
    a.label("L_g1_exit")
    a("s_endpgm")
    a.vm = []; a.lg = []

TS = 4160
CSZ = 4*TS + 4608
def emit_conv(a):
    a("s_lshl_b32 s42, s40, 12")
    a("s_add_u32 s44, s4, s42\ns_addc_u32 s45, s5, 0\ns_mov_b32 s46, 4096\ns_mov_b32 s47, 0x20000")
    srd(a, 48, 8, XBYTES, KVT_OFF)
    srd(a, 52, 8, XBYTES, ZT_OFF)
    a("s_lshr_b32 s43, s40, 1\ns_lshl_b32 s43, s43, 2")
    a("s_load_dword s56, s[6:7], s43")
    a("v_lshlrev_b32 v3, 4, v2")
    for j in range(4):
        a(f"s_add_u32 m0, s41, {4*TS + 512 + j*1024}")
        a(f"s_add_u32 s43, s42, {j*1024}")
        a("buffer_load_dwordx4 v3, s[48:51], s43 offen lds")
    for r in range(4):
        a(f"buffer_load_dwordx4 v[{16+8*r}:{19+8*r}], v3, s[44:47], 0 offen offset:{1024*r}")
        a(f"buffer_load_dwordx2 v[{20+8*r}:{21+8*r}], v3, s[44:47], 0 offen offset:{1024*r+16}")
    a("v_subrev_u32 v4, 32, v3")
    a("v_subrev_u32 v5, 16, v3")
    a("s_mov_b64 exec, 3")
    a("buffer_load_dwordx4 v[48:51], v4, s[44:47], 0 offen")
    a("buffer_load_dwordx2 v[52:53], v5, s[44:47], 0 offen")
    a("s_mov_b64 exec, -1")
    a("v_mov_b32 v6, 0\nv_mov_b32 v7, 0")
    a("v_lshlrev_b32 v8, 3, v2")
    a("v_add_u32 v8, s41, v8")
    a(f"ds_write_b64 v8, v[6:7] offset:{4*TS}")
    a("v_add_u32 v9, s41, v3")
    a("v_and_b32 v12, 3, v2")
    a(f"v_mul_u32_u24 v10, {TS}, v12")
    a("v_bfe_u32 v12, v2, 2, 2")
    a("v_lshrrev_b32 v13, 4, v2")
    a("v_lshlrev_b32 v14, 1, v13")
    a("v_sub_u32 v12, v12, v14")
    a("v_add_u32 v12, 6, v12")
    a("v_lshl_add_u32 v10, v12, 3, v10")
    a("v_add_u32 v10, s41, v10")
    a("v_and_b32 v12, 15, v2")
    a("v_lshl_add_u32 v11, v12, 1, v13")
    a("v_lshlrev_b32 v11, 4, v11")
    a(f"s_add_u32 s43, s41, {4*TS + 480}")
    a("v_add_u32 v15, s43, v11")
    a("s_waitcnt vmcnt(0)")
    for r in range(5):
        b = 16 + 8*r
        e = 56 + 12*r
        off = 32 + 1024*r if r < 4 else 0
        for j in range(4): a(f"v_alignbit_b32 v{e+j}, v{b+j+1}, v{b+j}, 16")
        for j in range(4): a(f"v_mov_b32 v{e+4+j}, v{b+j+1}")
        for j in range(4): a(f"v_alignbit_b32 v{e+8+j}, v{b+j+2}, v{b+j+1}, 16")
        if r == 4: a("s_mov_b64 exec, 3")
        a(f"ds_write_b128 v9, v[{e}:{e+3}] offset:{off}")
        a(f"ds_write_b128 v9, v[{e+4}:{e+7}] offset:{off+TS}")
        a(f"ds_write_b128 v9, v[{e+8}:{e+11}] offset:{off+2*TS}")
        a(f"ds_write_b128 v9, v[{b+2}:{b+5}] offset:{off+3*TS}")
        if r == 4: a("s_mov_b64 exec, -1")
        if r == 2: a("s_waitcnt lgkmcnt(0)")
    a("s_waitcnt lgkmcnt(0)")
    for r in range(32): a(f"v_mov_b32 v{16+r}, 0")
    a("s_mov_b32 s57, 8")
    lab = a.newlabel("L_conv")
    a.label(lab)
    for k in range(8):
        a(f"ds_read_b64 v[{48+4*k}:{49+4*k}], v10 offset:{k*512}")
        a(f"ds_read_b64 v[{50+4*k}:{51+4*k}], v10 offset:{k*512+8}")
        a(f"ds_read_b128 v[{80+4*k}:{83+4*k}], v15 offset:{k*512}")
        if k == 3: a("s_waitcnt lgkmcnt(3)")
    a("v_add_u32 v10, 64, v10")
    a("v_subrev_u32 v15, 64, v15")
    order = sorted([(aa, cc) for aa in range(8) for cc in range(8-aa)], key=lambda p: (max(p), p[0]))
    have = -1
    for aa, cc in order:
        mx = max(aa, cc)
        if mx > have:
            a(f"s_waitcnt lgkmcnt({min(15, 3*(7-mx))})"); have = mx
        b = aa + cc
        a(f"v_mfma_f32_16x16x32_bf16 v[{16+4*b}:{19+4*b}], v[{48+4*aa}:{51+4*aa}], v[{80+4*cc}:{83+4*cc}], v[{16+4*b}:{19+4*b}]")
    a("s_sub_u32 s57, s57, 1")
    a("s_cmp_lg_u32 s57, 0")
    a(f"s_cbranch_scc1 {lab}")
    a("v_lshrrev_b32 v14, 1, v13")
    a("v_lshl_add_u32 v14, v12, 1, v14")
    a("v_lshlrev_b32 v14, 4, v14")
    a("v_and_b32 v9, 1, v13")
    a("v_lshlrev_b32 v9, 3, v9")
    a("v_sub_u32 v14, v14, v9")
    a(f"s_add_u32 s43, s41, {4*TS + 512 + 8}")
    a("v_add_u32 v14, s43, v14")
    for b in range(8): a(f"ds_read_b64 v[{112+2*b}:{113+2*b}], v14 offset:{b*512}")
    a("s_and_b32 s43, s40, 1")
    a("s_lshl_b32 s58, s56, 16")
    a("s_and_b32 s59, s56, 0xffff0000")
    a("s_cmp_eq_u32 s43, 0")
    a("s_cselect_b32 s56, s58, s59")
    a("v_lshlrev_b32 v9, 5, v12")
    a("v_lshl_add_u32 v9, v13, 3, v9")
    a("s_waitcnt lgkmcnt(0)")
    for b in range(8):
        d0, d1 = 112+2*b, 113+2*b
        a(f"v_and_b32 v64, 0xffff0000, v{d1}")
        a(f"v_lshlrev_b32 v65, 16, v{d1}")
        a(f"v_and_b32 v66, 0xffff0000, v{d0}")
        a(f"v_lshlrev_b32 v67, 16, v{d0}")
        for r in range(4): a(f"v_fmac_f32 v{16+4*b+r}, s56, v{64+r}")
        a(f"v_cvt_pk_bf16_f32 v{16+4*b}, v{16+4*b}, v{17+4*b}")
        a(f"v_cvt_pk_bf16_f32 v{17+4*b}, v{18+4*b}, v{19+4*b}")
        a(f"buffer_store_dwordx2 v[{16+4*b}:{17+4*b}], v9, s[52:55], s42 offen offset:{b*512} sc1")
    srd(a, 48, 8, 576*4, FLAG_OFF)
    a("s_lshl_b32 s43, s40, 2")
    a("v_mov_b32 v3, s43")
    a("v_mov_b32 v4, 1")
    a("s_waitcnt vmcnt(0)")
    a("s_mov_b64 exec, 1")
    a("buffer_store_dword v4, v3, s[48:51], 0 offen sc1")

RED = 3*CSZ
IMG = RED + 61440
PT = IMG + 10240
OMG = PT + 20480
LDS2 = OMG + 256
def k2(a):
    kernel_begin(a, "gemm2_kernel")
    a("s_cmp_ge_u32 s2, 256")
    a("s_cbranch_scc1 L_g2_exit")
    stamp_rt(a, 0); stamp(a, 1)
    a("s_load_dwordx2 s[8:9], s[0:1], 104")
    a("s_load_dwordx4 s[4:7], s[0:1], 32")
    a("s_load_dwordx2 s[10:11], s[0:1], 0")
    a("s_load_dwordx2 s[14:15], s[0:1], 88")
    a("v_lshrrev_b32 v1, 6, v0")
    a("v_and_b32 v2, 63, v0")
    a("v_readfirstlane_b32 s24, v1")
    a("s_and_b32 s33, s2, 7")
    a("s_lshr_b32 s32, s2, 3")
    a("s_and_b32 s35, s32, 7")
    a("s_lshr_b32 s36, s32, 3")
    a("s_lshl_b32 s34, s33, 4")
    a("s_lshl_b32 s37, s36, 2")
    a("s_add_u32 s34, s34, s37")
    a("s_cmp_ge_u32 s24, 4")
    a("s_cbranch_scc1 L_g2_helper")
    a("v_lshlrev_b32 v3, 4, v2")
    for j in range(4):
        a(f"s_add_u32 s37, s24, {j}\ns_and_b32 s37, s37, 3\ns_mul_i32 s37, s37, {HST}")
        a(f"v_add_u32 v{4+j}, s37, v3")
    a("v_add_u32 v8, 4096, v3")
    a("v_add_u32 v9, 8192, v3")
    a(f"s_mul_i32 s26, s34, {HST}")
    a("s_mul_i32 s37, s24, 18*2048")
    a("s_add_u32 s26, s26, s37")
    a("s_mul_i32 s27, s35, 72")
    a("s_mul_i32 s37, s24, 18")
    a("s_add_u32 s27, s27, s37")
    a("s_mul_i32 s27, s27, 9216")
    a(f"s_add_u32 s27, s27, {WD_OFF}")
    a("s_add_u32 s38, s36, s35")
    a("s_and_b32 s38, s38, 3")
    a(f"s_mov_b32 s39, {LEAD}")
    a("s_mov_b32 s31, 0")
    a("s_waitcnt lgkmcnt(0)")
    srd(a, 20, 8, 0x2000000, 0)
    def next_chunk():
        if LEAD < 0:
            return f"s_and_b32 s37, s31, {-LEAD}\ns_lshl_b32 s28, s37, 11\ns_add_u32 s28, s28, s26\ns_mul_i32 s29, s37, 9216\ns_add_u32 s29, s29, s27\ns_add_u32 s31, s31, 1"
        if LEAD == 0:
            return "s_lshl_b32 s28, s31, 11\ns_add_u32 s28, s28, s26\ns_mul_i32 s29, s31, 9216\ns_add_u32 s29, s29, s27\ns_add_u32 s31, s31, 1"
        return "\n".join([
            "s_and_b32 s37, s31, 3",
            f"s_cmp_ge_u32 s31, {LEAD}",
            "s_cselect_b32 s37, s37, 7",
            "s_cmp_eq_u32 s37, s38",
            "s_addc_u32 s31, s31, 0",
            "s_and_b32 s37, s39, 3",
            "s_cmp_lt_u32 s39, 18",
            "s_cselect_b32 s37, s37, 7",
            "s_cmp_lg_u32 s37, s38",
            "s_cselect_b32 s37, s31, s39",
            "s_addc_u32 s31, s31, 0",
            "s_add_u32 s39, s39, 1",
            "s_lshl_b32 s28, s37, 11",
            "s_add_u32 s28, s28, s26",
            "s_mul_i32 s29, s37, 9216",
            "s_add_u32 s29, s29, s27"])
    def hreg(q, st): return 112 + 32*(q & 3) + 4*st
    def wrg(q, dt): return 128 + 32*(q & 3) + 4*dt
    def w8(q): return 240 + 4*((q >> 1) & 1)
    def accr(st, dt): return 16 + 24*st + 4*dt
    def group(j):
        o = []
        e = j & 1
        if e == 0: o.append(next_chunk())
        else: o.append(f"buffer_load_dwordx4 v[{w8(j)}:{w8(j)+3}], v9, s[20:23], s29 offen")
        for i in range(4):
            o.append(f"buffer_load_dwordx4 v[{wrg(j,i)}:{wrg(j,i)+3}], v{8 if e else 3}, s[20:23], s29 offen offset:{i*1024}")
            o.append(f"buffer_load_dwordx4 v[{hreg(j,i)}:{hreg(j,i)+3}], v{4+i}, s[20:23], s28 offen offset:{e*1024}")
        return o
    for j in range(3):
        for x in group(j): a(x)
    for r in range(96): a(f"v_mov_b32 v{16+r}, 0")
    stamp(a, 2)
    def half(q, fill, vm):
        a(f"s_waitcnt vmcnt({vm})")
        k = 0
        for st in range(4):
            for dt in range(5):
                A = wrg(q, dt) if dt < 4 else w8(q)
                dd = accr(st, dt if dt < 4 else 4 + (q & 1))
                a(f"v_mfma_f32_16x16x32_bf16 v[{dd}:{dd+3}], v[{A}:{A+3}], v[{hreg(q,st)}:{hreg(q,st)+3}], v[{dd}:{dd+3}]")
                if k % 2 == 0 and k//2 < len(fill): a(fill[k//2])
                k += 1
    a("s_mov_b32 s30, 8")
    a.raw(".p2align 6")
    a.label("L_g2_loop")
    for q in range(4): half(q, group(q+3), 16 if q % 2 == 0 else 17)
    a("s_sub_u32 s30, s30, 1")
    a("s_cmp_lg_u32 s30, 0")
    a("s_cbranch_scc1 L_g2_loop")
    half(0, group(3), 16); half(1, [], 17); half(2, [], 8); half(3, [], 0)
    stamp(a, 3)
    a("v_cmp_gt_u32 vcc, 32, v2")
    a("s_mul_i32 s37, s24, 15360")
    a(f"s_add_u32 s37, s37, {RED}")
    a("v_add_u32 v4, s37, v3")
    for dl in range(1, 4):
        a(f"s_sub_u32 s37, s24, {dl}\ns_and_b32 s37, s37, 3\ns_mul_i32 s37, s37, 15360\ns_add_u32 s37, s37, {RED + (dl-1)*5120}")
        a(f"v_add_u32 v{4+dl}, s37, v3")
    for st in (1, 2, 3, 0):
        for r in range(4): a(f"v_cndmask_b32 v{accr(st,4)+r}, v{accr(st,5)+r}, v{accr(st,4)+r}, vcc")
        if st:
            for dt in range(5): a(f"ds_write_b128 v4, v[{accr(st,dt)}:{accr(st,dt)+3}] offset:{(st-1)*5120 + dt*1024}")
    srd(a, 16, 14, XBYTES)
    a("s_mul_i32 s37, s24, 5120")
    a(f"s_add_u32 s37, s37, {PT}")
    a("v_add_u32 v8, s37, v3")
    a("v_and_b32 v10, 15, v2")
    a("s_lshl_b32 s37, s24, 6")
    a(f"s_add_u32 s37, s37, {OMG}")
    a("v_lshlrev_b32 v9, 2, v10")
    a("v_add_u32 v9, s37, v9")
    a("s_mul_i32 s37, s24, 2560")
    a(f"s_add_u32 s37, s37, {IMG}")
    a("v_mul_u32_u24 v11, 144, v10")
    a("v_lshrrev_b32 v12, 4, v2")
    a("v_lshl_add_u32 v11, v12, 3, v11")
    a("v_add_u32 v11, s37, v11")
    a("v_add_u32 v12, s37, v3")
    a("s_add_u32 s26, s34, s24")
    a("s_mul_i32 s26, s26, 16*1152")
    a("s_mul_i32 s37, s35, 144")
    a("s_add_u32 s26, s26, s37")
    for j in range(3):
        a(f"v_add_u32 v1, {64*j}, v2")
        a("v_mul_u32_u24 v10, 7282, v1")
        a("v_lshrrev_b32 v10, 16, v10")
        a("v_mul_u32_u24 v10, 1152-144, v10")
        a(f"v_lshl_add_u32 v{13+j}, v1, 4, v10")
    a("v_cmp_gt_u32 vcc, 16, v2")
    a(f"v_mov_b32 v1, {0x3ffffff0}")
    a("s_nop 0")
    a("v_cndmask_b32 v15, v1, v15, vcc")
    stamp(a, 4)
    a("s_waitcnt lgkmcnt(0)")
    a("s_barrier")
    stamp(a, 5)
    if STAMP: a("s_waitcnt lgkmcnt(0)")
    a.lds("ds_read_b32 v10, v9", "o")
    for dt in range(5):
        b = 112 + 16*dt
        for dl in range(3): a.lds(f"ds_read_b128 v[{b+4*dl}:{b+4*dl+3}], v{5+dl} offset:{dt*1024}", ("r", dt))
        a.lds(f"ds_read_b128 v[{b+12}:{b+15}], v8 offset:{dt*1024}", ("r", dt))
        if dt == 2: a.wait_lg(("r", 0))
    for dt in range(5):
        b = 112 + 16*dt; c = accr(0, dt)
        a.wait_lg(("r", dt))
        for r in range(4): a(f"v_add_f32 v{c+r}, v{c+r}, v{b+r}")
        for r in range(4): a(f"v_add_f32 v{b+4+r}, v{b+4+r}, v{b+8+r}")
        for r in range(4): a(f"v_add_f32 v{c+r}, v{c+r}, v{b+4+r}")
        if dt == 4:
            for r in range(4): a(f"v_mov_b32 v{b+r}, v{c+r}")
            a("s_nop 1")
            for r in range(4): a(f"v_permlane32_swap_b32 v{c+r}, v{b+r}")
            for r in range(4): a(f"v_add_f32 v{c+r}, v{c+r}, v{b+r}")
        for r in range(4): a(f"v_fmac_f32 v{b+12+r}, v10, v{c+r}")
        a(f"v_cvt_pk_bf16_f32 v{c}, v{b+12}, v{b+13}")
        a(f"v_cvt_pk_bf16_f32 v{c+1}, v{b+14}, v{b+15}")
        if dt == 4: a("s_mov_b32 exec_hi, 0")
        a.lds(f"ds_write_b64 v11, v[{c}:{c+1}] offset:{dt*32}", "w")
        if dt == 4: a("s_mov_b32 exec_hi, -1")
    a.wait_all_lg()
    for j in range(3): a.lds(f"ds_read_b128 v[{112+4*j}:{115+4*j}], v12 offset:{j*1024 if j < 2 else 2048}", ("f", j))
    for j in range(3):
        a.wait_lg(("f", j))
        a(f"buffer_store_dwordx4 v[{112+4*j}:{115+4*j}], v{13+j}, s[16:19], s26 offen")
    stamp(a, 6)
    stamp_flush(a, 7, 1)
    a("s_endpgm")
    a.lg = []
    a.label("L_g2_helper")
    if os.environ.get("NOHELP"): a("s_endpgm")
    a("s_setprio 3")
    a("s_waitcnt lgkmcnt(0)")
    a("s_cmp_eq_u32 s24, 7")
    a("s_cbranch_scc1 L_g2_pwave")
    a("s_sub_u32 s25, s24, 4")
    a(f"s_mul_i32 s41, s25, {CSZ}")
    a("s_lshl_b32 s40, s2, 1")
    a("s_add_u32 s40, s40, s25")
    a("s_cmp_lt_u32 s25, 2")
    a("s_cbranch_scc1 L_g2_conv")
    a("s_and_b32 s37, s32, 3")
    a("s_cmp_lg_u32 s37, 0")
    a("s_cbranch_scc1 L_g2_exit")
    a("s_lshl_b32 s40, s33, 3")
    a("s_lshr_b32 s37, s32, 2")
    a("s_add_u32 s40, s40, s37")
    a("s_add_u32 s40, s40, 512")
    a.label("L_g2_conv")
    emit_conv(a)
    if STAMP:
        a("s_mov_b64 exec, -1")
        for i in range(2, 7): stamp(a, i)
        stamp_flush(a, 7, 1)
    a("s_endpgm")
    a.label("L_g2_pwave")
    srd(a, 16, 10, XBYTES)
    srd(a, 20, 8, 0x2000000, 0)
    a("s_mul_i32 s26, s34, 16*1152")
    a("s_mul_i32 s37, s35, 144")
    a("s_add_u32 s26, s26, s37")
    a("v_mov_b32 v1, v2")
    for j in range(9):
        a("v_mul_u32_u24 v4, 7282, v1")
        a("v_lshrrev_b32 v4, 16, v4")
        a("v_mul_u32_u24 v4, 1152-144, v4")
        a("v_lshl_add_u32 v4, v1, 4, v4")
        a(f"s_mov_b32 m0, {IMG + j*1024}")
        a("v_add_u32 v1, 64, v1")
        a("buffer_load_dwordx4 v4, s[16:19], s26 offen lds")
    a("v_and_b32 v6, 15, v2")
    a("v_lshlrev_b32 v7, 3, v6")
    a("s_lshl_b32 s27, s34, 7")
    a(f"s_add_u32 s27, s27, {G_OFF}")
    for st in range(4): a(f"buffer_load_dwordx2 v[{8+2*st}:{9+2*st}], v7, s[20:23], s27 offen offset:{st*128}")
    a("v_mul_u32_u24 v16, 144, v6")
    a("v_lshrrev_b32 v17, 4, v2")
    a("v_lshl_add_u32 v16, v17, 3, v16")
    a(f"v_add_u32 v16, {IMG}, v16")
    a("v_lshlrev_b32 v18, 2, v6")
    a(f"v_add_u32 v18, {OMG}, v18")
    a("s_waitcnt vmcnt(0)")
    for st in range(4):
        for dt in range(5):
            i = st*5 + dt
            a(f"ds_read_b64 v[{32+2*i}:{33+2*i}], v16 offset:{st*16*144 + dt*32}")
            if i % 8 == 7: a("s_waitcnt lgkmcnt(0)")
    for st in range(4): a(f"ds_write_b32 v18, v{9+2*st} offset:{st*64}")
    a("v_lshlrev_b32 v19, 2, v2")
    a("s_mul_i32 s27, s35, 72*4")
    a(f"s_add_u32 s27, s27, {FLAG_OFF}")
    a("s_mov_b32 s30, 0x40000")
    stamp(a, 2)
    a.label("L_g2_poll")
    a("buffer_load_dword v20, v19, s[20:23], s27 offen sc1")
    a("buffer_load_dword v21, v19, s[20:23], s27 offen offset:32 sc1")
    a("s_waitcnt vmcnt(0)")
    a("v_and_b32 v20, v20, v21")
    a("v_cmp_ne_u32 vcc, 1, v20")
    a("s_cbranch_vccz L_g2_ready")
    a(f"s_sleep {int(os.environ.get('SLEEP','32'))}")
    a("s_sub_u32 s30, s30, 1")
    a("s_cmp_lg_u32 s30, 0")
    a("s_cbranch_scc1 L_g2_poll")
    a.label("L_g2_ready")
    stamp(a, 3)
    a("v_lshrrev_b32 v20, 3, v2")
    a("v_lshlrev_b32 v20, 12, v20")
    a("v_and_b32 v21, 7, v2")
    a("v_lshl_add_u32 v20, v21, 4, v20")
    a("s_mul_i32 s27, s35, 72*4096")
    a("s_lshl_b32 s37, s34, 5")
    a("s_add_u32 s27, s27, s37")
    a(f"s_add_u32 s27, s27, {ZT_OFF}")
    for i in range(9):
        a(f"buffer_load_dwordx4 v[{80+4*i}:{83+4*i}], v20, s[20:23], s27 offen sc1")
        if i < 8: a("s_add_u32 s27, s27, 8*4096")
    a("v_lshlrev_b32 v22, 4, v2")
    a(f"v_add_u32 v23, {IMG}, v22")
    a(f"v_add_u32 v22, {PT}, v22")
    a("v_lshrrev_b32 v24, 2, v2")
    a("v_lshlrev_b32 v24, 7, v24")
    a("v_and_b32 v25, 3, v2")
    a("v_lshl_add_u32 v24, v25, 3, v24")
    a(f"v_add_u32 v24, {IMG}, v24")
    a("s_waitcnt vmcnt(0) lgkmcnt(0)")
    for i in range(9): a(f"ds_write_b128 v23, v[{80+4*i}:{83+4*i}] offset:{i*1024}")
    a("s_waitcnt lgkmcnt(0)")
    for st in range(4):
        for dt in range(5): a(f"ds_read_b64_tr_b16 v[{120+2*(st*5+dt)}:{121+2*(st*5+dt)}], v24 offset:{dt*2048 + st*32}")
        if st % 2: a("s_waitcnt lgkmcnt(0)")
    for st in range(4):
        for dt in range(5):
            i = st*5 + dt
            z, q, o = 120+2*i, 32+2*i, 160+4*i
            a(f"v_lshlrev_b32 v{o}, 16, v{z}\nv_and_b32 v{o+1}, 0xffff0000, v{z}\nv_lshlrev_b32 v{o+2}, 16, v{z+1}\nv_and_b32 v{o+3}, 0xffff0000, v{z+1}")
            a(f"v_lshlrev_b32 v26, 16, v{q}\nv_and_b32 v27, 0xffff0000, v{q}\nv_lshlrev_b32 v28, 16, v{q+1}\nv_and_b32 v29, 0xffff0000, v{q+1}")
            for r in range(4): a(f"v_mul_f32 v{o+r}, v{o+r}, v{26+r}")
            for r in range(4): a(f"v_mul_f32 v{o+r}, v{o+r}, v{8+2*st}")
            a(f"ds_write_b128 v22, v[{o}:{o+3}] offset:{st*5120 + dt*1024}")
    stamp(a, 4)
    a("s_waitcnt lgkmcnt(0)")
    a("s_barrier")
    if STAMP:
        for i in range(5, 7): stamp(a, i)
        stamp_flush(a, 7, 1)
    a.label("L_g2_exit")
    a("s_endpgm")

def main(out):
    a = Asm()
    a.raw("; @launch kernel=gemm1_kernel grid=(256,1,1) block=(256,1,1) lds=163840")
    a.raw(f"; @launch kernel=gemm2_kernel grid=(256,1,1) block=(512,1,1) lds={LDS2}")
    a.raw('.amdgcn_target "amdgcn-amd-amdhsa--gfx950"')
    k1(a); k2(a)
    kernel_desc(a, "gemm1_kernel", 256+232, 256)
    kernel_desc(a, "gemm2_kernel", 256, 256)
    open(out, "w").write(a.text())
if __name__ == "__main__":
    main(sys.argv[1] if len(sys.argv) > 1 else "gated_mix__ssm_conv_h3__glu_gated_glu__prompt.s")
```
